```python
import torch

def _softmax(x, axis=-1):
    return torch.softmax(x, dim=axis)
def _gelu(x):
    return torch.nn.functional.gelu(x, approximate="tanh")
def _silu(x):
    return torch.nn.functional.silu(x)
def _sigmoid(x):
    return torch.sigmoid(x)
def _layernorm(x, axis=-1, eps=1e-5):
    m = x.mean(dim=axis, keepdim=True)
    v = x.var(dim=axis, keepdim=True, unbiased=False)
    return (x - m) / torch.sqrt(v + eps)
def _scatter_add(tgt, idx, src, axis=0):
    return tgt.clone().index_add_(axis, idx, src)
def _segment_sum(src, seg, n):
    out = torch.zeros((n,) + src.shape[1:], dtype=src.dtype)
    return out.index_add_(0, seg, src)
def _pad(x, pw):
    flat = tuple(v for pair in reversed(pw) for v in pair)
    return torch.nn.functional.pad(x, flat)

kernel_name = 'recurrent_scan__mha_block_cached__glu_gated_reglu__decode'

def setup_inputs():

    _w = (lambda a: (lambda t: t.to(torch.bfloat16) if t.is_floating_point() else t)(torch.as_tensor(a)))
    def _A_setup():
        B, Sq, D = 4, 1, 512
        H, Sk, Dh = 32, 4096, 128
        return {
            "x": _w((lambda *s: torch.randn(*s, dtype=torch.bfloat16) * 0.05)(B, Sq, D)),
            "k_cache": _w((lambda *s: torch.randn(*s, dtype=torch.bfloat16) * 3.2)(B, H, Sk, Dh)),
            "v_cache": _w((lambda *s: torch.randn(*s, dtype=torch.bfloat16) * 3.2)(B, H, Sk, Dh)),
            "wq": _w((lambda *s: torch.randn(*s, dtype=torch.bfloat16) * 3.2)(D, H * Dh) * (D ** -0.5)),
            "wo": _w((lambda *s: torch.randn(*s, dtype=torch.bfloat16) * 3.2)(H * Dh, D) * ((H * Dh) ** -0.5)),
        }
    _A_in = _A_setup()

    def _B_setup():
        B, S, D, F = 4, 1, 512, 1792
        return {
            "x": _w((lambda *s: torch.randn(*s, dtype=torch.bfloat16) * 0.05)(B, S, D)),
            "W_gate": _w((lambda *s: torch.randn(*s, dtype=torch.bfloat16) * 0.4)(D, F) * (2.0 / D) ** 0.5),
            "W_up": _w((lambda *s: torch.randn(*s, dtype=torch.bfloat16) * 0.4)(D, F) * (2.0 / D) ** 0.5),
            "W_down": _w((lambda *s: torch.randn(*s, dtype=torch.bfloat16) * 0.4)(F, D) * (1.0 / F) ** 0.5),
        }
    _B_in = _B_setup()

    return {
        "A_x": _A_in["x"],
        "A_k_cache": _A_in["k_cache"],
        "A_v_cache": _A_in["v_cache"],
        "A_wq": _A_in["wq"],
        "A_wo": _A_in["wo"],
        "B_x": _B_in["x"],
        "B_W_gate": _B_in["W_gate"],
        "B_W_up": _B_in["W_up"],
        "B_W_down": _B_in["W_down"],
    }

def reference(A_x, A_k_cache, A_v_cache, A_wq, A_wo, B_x, B_W_gate, B_W_up, B_W_down):
    def _A_ref(x, k_cache, v_cache, wq, wo):
        B, Sq, D = x.shape
        H, Dh = 32, 128
        q = (lambda x, *d: x.permute(*d))((x @ wq).reshape(B, Sq, H, Dh), 0, 2, 1, 3)
        scores = torch.einsum("bhqd,bhkd->bhqk", q, k_cache) * (Dh ** -0.5)
        p = _softmax(scores, axis=-1)
        o = torch.einsum("bhqk,bhkd->bhqd", p, v_cache)
        return (lambda x, *d: x.permute(*d))(o, 0, 2, 1, 3).reshape(B, Sq, H * Dh) @ wo

    def _B_ref(x, W_gate, W_up, W_down):
        gate = torch.einsum("bsd,df->bsf", x, W_gate)
        up = torch.einsum("bsd,df->bsf", x, W_up)
        gate = gate * (lambda x, dt: x.to(dt))(gate > 0, gate.dtype)
        h = gate * up
        return torch.einsum("bsf,fd->bsd", h, W_down)

    x = A_x
    xn = _layernorm(x, axis=-1)
    s = _A_ref(xn, A_k_cache, A_v_cache, A_wq, A_wo)
    g = _silu(_B_ref(xn, B_W_gate, B_W_up, B_W_down))
    return x + s * g
```

```python
import re
TRANS = ("v_exp_f32","v_log_f32","v_rcp_f32","v_rsq_f32","v_sqrt_f32","v_sin_f32","v_cos_f32")
def regs(tok):
    tok = tok.strip()
    tok = tok.lstrip("-")
    m = re.fullmatch(r"abs\((.*)\)", tok)
    if m: tok = m.group(1)
    tok = tok.strip("|")
    m = re.fullmatch(r"([vsa])(\d+)", tok)
    if m: return {(m.group(1), int(m.group(2)))}
    m = re.fullmatch(r"([vsa])\[(\d+):(\d+)\]", tok)
    if m: return {(m.group(1), i) for i in range(int(m.group(2)), int(m.group(3))+1)}
    if tok == "vcc": return {("s", 106), ("s", 107)}
    if tok == "vcc_lo": return {("s", 106)}
    if tok == "vcc_hi": return {("s", 107)}
    if tok in ("exec",): return {("s", 126), ("s", 127)}
    if tok == "exec_lo": return {("s", 126)}
    if tok == "exec_hi": return {("s", 127)}
    if tok == "m0": return {("s", 124)}
    return set()
def split_ops(s):
    out = []; depth = 0; cur = ""
    for ch in s:
        if ch in "[(": depth += 1
        if ch in "])": depth -= 1
        if ch == "," and depth == 0: out.append(cur.strip()); cur = ""
        else: cur += ch
    if cur.strip(): out.append(cur.strip())
    return out
class Ins:
    def __init__(self, text):
        self.text = text
        t = text.split(";")[0].strip()
        p = t.split(None, 1)
        self.op = p[0]
        ops = split_ops(p[1]) if len(p) > 1 else []
        if ops:
            last = ops[-1].split()
            mods = last[1:]; ops[-1] = last[0]
        else: mods = []
        self.mods = mods; self.ops = ops
        op = self.op
        self.valu = op.startswith("v_") and not op.startswith("v_mfma")
        self.mfma = op.startswith("v_mfma")
        self.dpp = op.endswith("_dpp")
        self.trans = any(op.startswith(x) for x in TRANS)
        self.vmem = op.startswith(("buffer_", "global_", "flat_"))
        self.ds = op.startswith("ds_")
        self.salu = op.startswith("s_")
        self.perm = op.startswith("v_permlane")
        self.rdlane = op.startswith(("v_readlane", "v_readfirstlane", "v_writelane"))
        R = [regs(o) for o in ops]
        w = set(); r = set()
        self.srcc = set(); self.srcab = set(); self.stdata = set()
        if self.mfma:
            w = R[0]; self.srcab = R[1] | R[2]; self.srcc = R[3]; r = self.srcab | self.srcc
            self.passes = 8 if "32x32x16" in op else 4
        elif self.valu:
            if op.startswith("v_cmp"):
                w = R[0]; r = set().union(*R[1:])
                if op.startswith("v_cmpx"): w = w | regs("exec")
            elif self.perm:
                w = R[0] | R[1]; r = R[0] | R[1]
            elif op.startswith(("v_add_co", "v_sub_co", "v_addc_co", "v_subb_co", "v_div_scale")):
                w = R[0] | R[1]; r = set().union(*R[2:])
            elif op == "v_nop": pass
            else:
                w = R[0]; r = set().union(*R[1:]) if len(R) > 1 else set()
                if op.startswith(("v_fmac", "v_dot2c", "v_writelane")) or self.dpp: r = r | R[0]
        elif self.vmem:
            if "load" in op:
                if "lds" in mods or "_lds_" in op: r = set().union(*R) | regs("m0")
                else: w = R[0]; r = set().union(*R[1:])
            else:
                r = set().union(*R)
                if op.startswith("buffer_"): data = R[0]
                else: data = R[1]
                if "x3" in op or "x4" in op: self.stdata = data
                if "atomic" in op and "sc0" in mods: w = R[0]
        elif self.ds:
            if op.startswith(("ds_read", "ds_bpermute", "ds_permute", "ds_swizzle")) or "_rtn" in op:
                w = R[0]; r = set().union(*R[1:])
            else: r = set().union(*R)
        elif self.salu:
            if op.startswith(("s_cmp", "s_cbranch", "s_branch", "s_waitcnt", "s_nop", "s_barrier", "s_sleep", "s_setprio", "s_endpgm")):
                r = set().union(*R) if R else set()
            else:
                w = R[0] if R else set(); r = set().union(*R[1:]) if len(R) > 1 else set()
        self.w = w; self.r = r
        self.states = 1
        if op == "s_nop": self.states = int(ops[0]) + 1
def vg(s): return {x for x in s if x[0] in "va"}
def sg(s): return {x for x in s if x[0] == "s"}
EXEC = {("s",126),("s",127)}
def need(p, c):
    n = 0
    if p.valu:
        pv = vg(p.w); ps = sg(p.w)
        if c.dpp and pv & vg(c.r): n = max(n, 2)
        if c.perm and pv & vg(c.r): n = max(n, 2)
        if c.mfma and pv & c.r: n = max(n, 2)
        if c.rdlane and pv & vg(c.r): n = max(n, 1)
        if p.trans and c.valu and not c.trans and pv & vg(c.r): n = max(n, 1)
        if c.valu and ps & sg(c.r): n = max(n, 4 if c.rdlane else 2)
        if c.vmem and ps & sg(c.r): n = max(n, 5)
        if c.salu and ps & sg(c.r): n = max(n, 1)
        if ps & EXEC:
            if c.dpp: n = max(n, 5)
            if c.mfma or c.perm or c.rdlane: n = max(n, 4)
    if p.mfma:
        big = {4: 8, 8: 12}[p.passes]
        if c.mfma:
            if p.w & c.srcab: n = max(n, big)
            if p.w & c.srcc and not (p.w == c.srcc and p.passes == c.passes): n = max(n, big - 2)
            if p.w & c.w and not (p.w == c.srcc): n = max(n, big - 2) if not (p.w == c.w) else n
        elif c.valu:
            if p.w & (c.r | c.w): n = max(n, big)
            if p.srcc & c.w: n = max(n, {4: 3, 8: 7}[p.passes])
        elif c.vmem or c.ds:
            if p.w & (c.r | c.w): n = max(n, big)
    if p.vmem and p.stdata:
        if p.stdata & c.w: n = max(n, 2 if c.valu else 1)
    if p.salu and ("s",124) in p.w and c.vmem and ("s",124) in c.r: n = max(n, 1)
    return n
class Emit:
    def __init__(self):
        self.lines = []; self.hist = []; self.nops = 0
    def raw(self, s): self.lines.append(s)
    def label(self, name):
        self.lines.append(name + ":")
    def fence(self, n=12):
        worst = 0; dist = 0
        for p in reversed(self.hist):
            lim = 12 if (p.mfma and p.passes == 8) else 8 if p.mfma else 5 if (p.valu and sg(p.w)) else 2 if (p.valu or p.stdata) else 0
            worst = max(worst, lim - dist); dist += p.states
            if dist >= 12: break
        if worst > 0: self._nop(worst)
    def _nop(self, k):
        while k > 0:
            m = min(k, 16); i = Ins(f"s_nop {m-1}"); self.lines.append("    " + i.text); self.hist.append(i); k -= m; self.nops += 1
    def __call__(self, text):
        for t in text.split("\n"):
            t = t.strip()
            if not t: continue
            if t.startswith(";"): self.lines.append("    " + t); continue
            c = Ins(t)
            dist = 0; pad = 0
            for p in reversed(self.hist):
                pad = max(pad, need(p, c) - dist); dist += p.states
                if dist >= 12: break
            if pad > 0: self._nop(pad)
            self.lines.append("    " + t); self.hist.append(c)
            if len(self.hist) > 40: self.hist = self.hist[-24:]
    def text(self): return "\n".join(self.lines) + "\n"
```

```python
import sys
from emit import Emit
KN = "recurrent_scan__mha_block_cached__glu_gated_reglu__decode_kernel"
DPPF = "row_mask:0xf bank_mask:0xf"
QP, OP, ML, FW, XN, WT = 0, 2048, 4096, 4160, 8192, 16384
LDS_BYTES = 32768
REC = 4096
HB = 256 * REC
STAMP = 16 << 20
WS_BYTES = 32 << 20
LOG2E = 0x3fb8aa3b
SCALE = 0x3db504f3
EPS = 0x3727c5ac

def gen(D=6, R=40, DH=10, DO=4, kv="nt", wfl="nt", ffl="nt", inter=False, stamps=False, cpf=True, hs="sc1", early=0, header=""):
    E = Emit()
    HOFF = 16384 if inter else 524288
    GSTR = 32768 if inter else 16384
    sX, sJ, sH, sB, sHALF, sP, sROT, sT, sT2, sSPIN = "s28","s29","s30","s31","s32","s33","s34","s60","s61","s62"
    nst = [0]
    def stamp(i):
        if stamps: E(f"s_memrealtime s[{76+2*i}:{77+2*i}]")
    def stamp_flush(n):
        if not stamps: return
        E("s_waitcnt lgkmcnt(0)")
        E("s_getreg_b32 s63, hwreg(HW_REG_XCC_ID)")
        E("s_mov_b32 s56, s26\ns_and_b32 s57, s27, 0xffff")
        E(f"s_mov_b32 s58, {WS_BYTES}\ns_mov_b32 s59, 0x20000")
        E(f"s_lshl_b32 {sT}, s2, 3\ns_add_u32 {sT}, {sT}, s3\ns_lshl_b32 {sT}, {sT}, 6\ns_add_u32 {sT}, {sT}, {STAMP}")
        E("s_mov_b64 exec, 1")
        for i in range(12):
            E(f"v_mov_b32 v{4+i}, " + (f"s{76+2*i}" if i in n else "0"))
        E("v_mov_b32 v16, s63\nv_mov_b32 v17, 0\nv_mov_b32 v18, 0\nv_mov_b32 v19, 0")
        for i in range(4):
            E(f"buffer_store_dwordx4 v[{4+4*i}:{7+4*i}], off, s[56:59], {sT} offset:{16*i}")
    def srd(r, ptr, off=None, size=0):
        if off is None:
            E(f"s_mov_b32 s{r}, s{ptr}\ns_and_b32 s{r+1}, s{ptr+1}, 0xffff")
        else:
            E(f"s_add_u32 s{r}, s{ptr}, {off}\ns_addc_u32 s{r+1}, s{ptr+1}, 0\ns_and_b32 s{r+1}, s{r+1}, 0xffff")
        E(f"s_mov_b32 s{r+2}, {size}\ns_mov_b32 s{r+3}, 0x20000")
    def row_allreduce(op, v):
        for m in ("quad_perm:[1,0,3,2]", "quad_perm:[2,3,0,1]", "row_half_mirror", "row_mirror"):
            E(f"{op}_dpp {v}, {v}, {v} {m} {DPPF}")
    def xrow_allreduce(op, v, t):
        for sw in ("v_permlane16_swap_b32", "v_permlane32_swap_b32"):
            E(f"v_mov_b32 {t}, {v}\n{sw} {v}, {t}\n{op} {v}, {v}, {t}")
    def masks(base, t):
        E(f"v_and_b32 {t}, 1, v0\nv_lshlrev_b32 {t}, 4, {t}\nv_mov_b32 v{base+3}, 0xffff\nv_lshlrev_b32 {t}, {t}, v{base+3}")
        E(f"v_bfe_u32 v{base+3}, v0, 1, 3")
        for jx in range(4):
            E(f"v_cmp_eq_u32 vcc, {jx}, v{base+3}\nv_cndmask_b32 v{base+jx}, 0, {t}, vcc")
    def masked_mfma(acc, pp, bc, breg, abuf, mbase, first=False):
        for jx in range(4):
            E(f"v_and_b32_dpp v{abuf+jx}, {pp}, v{mbase+jx} row_newbcast:{bc} {DPPF}")
        return f"v_mfma_f32_16x16x32_bf16 v[{acc}:{acc+3}], v[{abuf}:{abuf+3}], v[{breg}:{breg+3}], " + ("0" if first else f"v[{acc}:{acc+3}]")

    if header: E.raw(header.rstrip("\n"))
    E.raw(f"; @launch grid=(256,1,1) block=(512,1,1) lds={LDS_BYTES}")
    E.raw('.amdgcn_target "amdgcn-amd-amdhsa--gfx950"\n.text')
    E.raw(f".globl {KN}\n.p2align 8\n.type {KN},@function\n{KN}:")
    E("s_cmp_ge_u32 s2, 0x100\ns_cbranch_scc1 L_end")
    E("s_load_dwordx16 s[4:19], s[0:1], 0")
    E("s_load_dwordx8 s[20:27], s[0:1], 64")
    stamp(0)
    E("v_lshrrev_b32 v1, 6, v0\nv_and_b32 v0, 63, v0\nv_readfirstlane_b32 s3, v1")
    E(f"s_and_b32 {sX}, s2, 7\ns_lshr_b32 {sJ}, s2, 3")
    E(f"s_and_b32 {sH}, {sJ}, 24\ns_add_u32 {sH}, {sH}, {sX}")
    E(f"s_bfe_u32 {sB}, {sJ}, 0x20001\ns_and_b32 {sHALF}, {sJ}, 1")
    E(f"s_lshl_b32 {sP}, {sB}, 5\ns_add_u32 {sP}, {sP}, {sH}")
    E("v_lshrrev_b32 v1, 4, v0")
    E("s_cmp_ge_u32 s3, 4\ns_cbranch_scc1 L_helper")

    RB = 256 - 4*R; SB = RB - 32; BQ = SB - 16; DB = [BQ-8, BQ-4]; OA = BQ - 12; MB = BQ - 16
    assert MB >= 20
    T1, T2, MX, LS, NM = "v8", "v9", "v10", "v11", "v12"
    E(f"s_lshl_b32 {sT}, {sP}, 20\ns_mul_i32 {sT2}, {sHALF}, {HOFF}\ns_add_u32 {sT}, {sT}, {sT2}")
    E(f"s_sub_u32 {sT2}, 0x100000, {sT2}")
    E("s_lshl_b32 s35, s3, 12")
    E("v_and_b32 v2, 3, v0\nv_lshlrev_b32 v2, 4, v2\nv_lshl_add_u32 v2, v1, 6, v2")
    E("v_bfe_u32 v3, v0, 2, 2\nv_lshl_add_u32 v2, v3, 8, v2\nv_add_u32 v2, s35, v2")
    E("v_lshl_add_u32 v3, v0, 4, s35")
    E("s_waitcnt lgkmcnt(0)")
    srd(36, 6, sT, sT2); srd(40, 8, sT, sT2)
    NL = 256
    cur = [None]
    def issue(n):
        t, i = (n % 128) // 4, n % 4
        if cur[0] != t: E(f"s_mov_b32 s44, {t*GSTR}"); cur[0] = t
        r = RB + 4*(n % R)
        if n < 128: E(f"buffer_load_dwordx4 v[{r}:{r+3}], v2, s[36:39], s44 offen offset:{i*1024} {kv}")
        else:       E(f"buffer_load_dwordx4 v[{r}:{r+3}], v3, s[40:43], s44 offen offset:{i*1024} {kv}")
    st = {"issued": 0, "landed": 0}
    def wait_landed(k):
        if st["landed"] < k:
            E(f"s_waitcnt vmcnt({st['issued']-k})"); st["landed"] = k
    def paced_issue():
        n = st["issued"]
        wait_landed(n - D + 1)
        issue(n); st["issued"] += 1
    for n in range(D): paced_issue()
    masks(MB, T1)
    for i in range(16): E(f"v_mov_b32 v{BQ+i}, 0")
    E(f"v_mov_b32 {MX}, 0xff800000\nv_mov_b32 {LS}, 0")
    E("v_and_b32 v4, 3, v0\nv_lshl_add_u32 v4, v1, 2, v4\nv_lshlrev_b32 v4, 5, v4")
    E("v_and_b32 v5, 15, v0\nv_lshlrev_b32 v5, 5, v5\nv_lshl_add_u32 v5, v1, 4, v5")
    E(f"s_lshl_b32 s46, s3, 9\ns_add_u32 s46, s46, {OP}\nv_add_u32 v5, s46, v5")
    E(f"s_lshl_b32 s46, s3, 3\ns_add_u32 s46, s46, {ML}\nv_mov_b32 v6, s46")
    E(f"s_mov_b32 s47, {SCALE}\ns_mov_b32 s48, {LOG2E}")
    while st["issued"] < R - early: paced_issue()
    stamp(1)
    E("s_barrier")
    stamp(2)
    for u in range(4):
        E(f"ds_read_b128 v[{SB+8*u}:{SB+8*u+3}], v4 offset:{QP+512*u}\nds_read_b128 v[{SB+8*u+4}:{SB+8*u+7}], v4 offset:{QP+512*u+16}")
    while st["issued"] < R: paced_issue()
    E("s_waitcnt lgkmcnt(4)" if not stamps else "s_waitcnt lgkmcnt(0)")
    for e in range(8): E(f"v_add_f32 v{SB+e}, v{SB+e}, v{SB+8+e}")
    E("s_waitcnt lgkmcnt(0)")
    for e in range(8): E(f"v_add_f32 v{SB+16+e}, v{SB+16+e}, v{SB+24+e}")
    for e in range(8): E(f"v_add_f32 v{SB+e}, v{SB+e}, v{SB+16+e}")
    for e in range(4): E(f"v_cvt_pk_bf16_f32 v{SB+8+e}, v{SB+2*e}, v{SB+2*e+1}")
    for i in range(4):
        for e in range(4):
            E(f"v_mov_b32_dpp v{BQ+4*i+e}, v{SB+8+e} quad_perm:[0,1,2,3] row_mask:0xf bank_mask:{1<<i:#x}")
    def qk_post(t):
        d = DB[t & 1]
        return [f"v_mov_b32_dpp {T1}, v{d} quad_perm:[0,0,0,0] {DPPF}",
                f"v_mov_b32_dpp {T2}, v{d+2} quad_perm:[2,2,2,2] {DPPF}",
                None,
                f"v_add_f32_dpp {T1}, v{d+1}, {T1} quad_perm:[1,1,1,1] {DPPF}",
                f"v_add_f32_dpp {T2}, v{d+3}, {T2} quad_perm:[3,3,3,3] {DPPF}",
                f"v_add_f32 {T1}, {T1}, {T2}",
                None,
                f"v_cvt_pk_bf16_f32 {T1}, 0, {T1}",
                f"v_mul_f32 {T1}, s47, {T1}",
                None,
                f"v_cvt_pk_bf16_f32 v{SB+t}, 0, {T1}",
                f"v_max_f32 {MX}, {MX}, v{SB+t}"]
    def expo(t):
        E(f"v_fma_f32 {T1}, v{SB+t}, s48, {NM}\nv_exp_f32 {T1}, {T1}")
        E(f"v_add_f32 {LS}, {LS}, {T1}\nv_cvt_pk_bf16_f32 v{SB+t}, {T1}, {T1}")
    def group(gi):
        wait_landed(4*gi + 4)
        if gi < 32:
            t = gi; d = DB[t & 1]
            mf = []
            for i in range(4):
                r = RB + 4*((4*gi+i) % R)
                mf.append(f"v_mfma_f32_16x16x32_bf16 v[{d}:{d+3}], v[{r}:{r+3}], v[{BQ+4*i}:{BQ+4*i+3}], " + ("0" if i == 0 else f"v[{d}:{d+3}]"))
            E(mf.pop(0))
            if t > 0:
                for x in qk_post(t-1): E(x if x else mf.pop(0))
            for x in mf: E(x)
            if t == 31:
                for x in qk_post(31):
                    if x: E(x)
                E(f"v_max_f32_dpp {MX}, {MX}, {MX} row_ror:4 {DPPF}\nv_max_f32_dpp {MX}, {MX}, {MX} row_ror:8 {DPPF}")
                xrow_allreduce("v_max_f32", MX, T1)
                E(f"v_mul_f32 {MX}, s48, {MX}\nv_sub_f32 {NM}, 0, {MX}")
                expo(0); expo(1)
                stamp(3)
        else:
            t = gi - 32
            pend = None
            for i in range(4):
                r = RB + 4*((4*gi+i) % R)
                m = masked_mfma(OA, f"v{SB+t}", 4*i, r, BQ+4*i, MB, first=(t == 0 and i == 0))
                if pend: E(pend)
                pend = m
            if t < 15: expo(2*t+2)
            E(pend)
            if t < 15: expo(2*t+3)
            if t == 15:
                E(f"v_add_f32_dpp {LS}, {LS}, {LS} row_ror:4 {DPPF}\nv_add_f32_dpp {LS}, {LS}, {LS} row_ror:8 {DPPF}")
                xrow_allreduce("v_add_f32", LS, T1)
                E(f"v_min_u32 {MX}, -2, {MX}\nv_min_u32 {LS}, -2, {LS}")
                E(f"ds_write_b64 v6, v[10:11]")
    done = 0
    while done < 64:
        if st["issued"] < NL and st["issued"] - 4*done <= R - 1 and not (st["issued"] - 4*done >= D + 4 and (st["issued"] % 2 == 0) and st.get("last") == "i"):
            paced_issue(); st["last"] = "i"
            if st["issued"] - 4*done >= D + 4 and st["issued"] % 2 == 0:
                group(done); done += 1; st["last"] = "g"
        else:
            group(done); done += 1; st["last"] = "g"
    E("s_mov_b32 exec_hi, 0")
    E(f"ds_write_b128 v5, v[{OA}:{OA+3}]")
    E("s_waitcnt lgkmcnt(0)")
    stamp(4)
    E("s_barrier")
    stamp_flush([0,1,2,3,4])
    E("s_endpgm")

    E.label("L_helper")
    WB = 128; MB = 12; AB = [16, 20]; AC = 24
    E("s_sub_u32 s35, s3, 4")
    E(f"s_and_b32 {sROT}, {sJ}, 7\ns_lshl_b32 {sROT}, {sROT}, 2")
    E(f"s_lshl_b32 {sP}, {sP}, 1\ns_add_u32 {sP}, {sP}, {sHALF}\ns_lshl_b32 {sP}, {sP}, 12")
    E("v_and_b32 v2, 15, v0")
    E(f"v_lshl_add_u32 v3, v2, 1, {sROT}\nv_and_b32 v3, 31, v3\nv_lshl_add_u32 v3, v1, 5, v3")
    E("s_lshl_b32 s45, s35, 8\nv_lshl_add_u32 v4, v3, 1, s45")
    E("v_lshlrev_b32 v5, 4, v0")
    E("s_lshl_b32 s46, s35, 20\nv_lshlrev_b32 v6, 18, v1\nv_lshl_add_u32 v6, v2, 4, v6\nv_add_u32 v6, s46, v6")
    E(f"s_lshl_b32 s47, {sB}, 10\ns_lshl_b32 {sT}, {sH}, 8\ns_sub_u32 {sT2}, 0x400000, {sT}\ns_lshl_b32 s44, {sROT}, 13")
    E("s_waitcnt lgkmcnt(0)")
    srd(36, 4, None, 4096); srd(40, 10, sT, sT2)
    E("buffer_load_dwordx4 v[28:31], v5, s[36:39], s47 offen")
    E("buffer_load_dword v7, v4, s[36:39], s47 offen")
    def wq_issue(i):
        E(f"buffer_load_dwordx4 v[{WB+4*i}:{WB+4*i+3}], v6, s[40:43], s44 offen {wfl}")
        if i < 31: E("s_add_u32 s44, s44, 0x2000\ns_and_b32 s44, s44, 0x3ffff")
    for i in range(DH): wq_issue(i)
    srd(52, 26, None, WS_BYTES)
    for e in range(4): E(f"v_mov_b32 v{16+e}, -1")
    E(f"s_lshl_b32 s45, s35, 10\ns_add_u32 s45, s45, {sP}")
    E(f"buffer_store_dwordx4 v[16:19], v5, s[52:55], s45 offen {hs}")
    extra = 1
    if cpf:
        E("s_getpc_b64 s[56:57]")
        E.label("L_pc")
        E(f"s_sub_u32 s56, s56, L_pc-{KN}\ns_subb_u32 s57, s57, 0\ns_and_b32 s57, s57, 0xffff")
        E(f"s_mov_b32 s58, L_end-{KN}\ns_mov_b32 s59, 0x20000")
        E(f"s_lshl_b32 s45, {sJ}, 2\ns_add_u32 s45, s45, s35\ns_lshl_b32 s45, s45, 8\nv_lshlrev_b32 v40, 2, v0")
        E("buffer_load_dword v41, v40, s[56:59], s45 offen")
        extra += 1
    masks(MB, "v8")
    E(f"s_waitcnt vmcnt({DH+extra})")
    stamp(1)
    for e in range(4): E(f"v_lshlrev_b32 v{32+2*e}, 16, v{28+e}\nv_and_b32 v{33+2*e}, 0xffff0000, v{28+e}")
    E("v_add_f32 v8, v32, v33\nv_add_f32 v9, v34, v35\nv_add_f32 v10, v36, v37\nv_add_f32 v11, v38, v39")
    E("v_add_f32 v8, v8, v9\nv_add_f32 v10, v10, v11\nv_add_f32 v8, v8, v10")
    row_allreduce("v_add_f32", "v8"); xrow_allreduce("v_add_f32", "v8", "v9")
    E("v_mul_f32 v8, 0x3b000000, v8")
    for e in range(8): E(f"v_sub_f32 v{32+e}, v{32+e}, v8")
    E("v_mul_f32 v9, v32, v32\nv_mul_f32 v10, v33, v33")
    for e in range(2, 8): E(f"v_fmac_f32 v{9+(e&1)}, v{32+e}, v{32+e}")
    E("v_add_f32 v9, v9, v10")
    row_allreduce("v_add_f32", "v9"); xrow_allreduce("v_add_f32", "v9", "v10")
    def ln_finish(mean, var):
        E(f"v_mul_f32 {var}, 0x3b000000, {var}\nv_cvt_pk_bf16_f32 {mean}, 0, {mean}\nv_cvt_pk_bf16_f32 {var}, 0, {var}")
        E(f"v_add_f32 {var}, {EPS:#x}, {var}\nv_cvt_pk_bf16_f32 {var}, 0, {var}\nv_sqrt_f32 {var}, {var}")
        E(f"v_cvt_pk_bf16_f32 {var}, 0, {var}\nv_rcp_f32 {var}, {var}")
    ln_finish("v8", "v9")
    E("v_lshlrev_b32 v10, 16, v7\nv_and_b32 v11, 0xffff0000, v7")
    for r in ("v10", "v11"):
        E(f"v_sub_f32 {r}, {r}, v8\nv_cvt_pk_bf16_f32 {r}, 0, {r}\nv_mul_f32 {r}, {r}, v9\nv_cvt_pk_bf16_f32 {r}, {r}, {r}")
    stamp(2)
    def project(pp, issue_fn, depth, extra=0):
        pend = None
        for i in range(32):
            m = masked_mfma(AC, pp[i & 1], i >> 1, WB+4*i, AB[i & 1], MB, first=(i == 0))
            if pend: E(pend)
            if issue_fn:
                E(f"s_waitcnt vmcnt({min(32, i+depth) - i - 1 + (extra if i < depth else 0)})")
                if i + depth < 32: issue_fn(i + depth)
            pend = m
        E(pend)
    project(("v10", "v11"), wq_issue, DH, extra)
    E("s_waitcnt vmcnt(0)")
    E("v_lshlrev_b32 v8, 5, v2\nv_lshl_add_u32 v8, v1, 4, v8\ns_lshl_b32 s46, s35, 9\nv_add_u32 v8, s46, v8")
    E(f"v_and_b32 v9, 3, v0\nv_lshlrev_b32 v9, 3, v9\nv_add_u32 v9, {ML}, v9\nv_mov_b32 v10, -1\nv_mov_b32 v11, -1")
    E("s_mov_b32 exec_hi, 0")
    E(f"ds_write_b128 v8, v[{AC}:{AC+3}] offset:{QP}")
    E("ds_write_b64 v9, v[10:11]")
    E("s_mov_b32 exec_hi, -1")
    E("s_waitcnt lgkmcnt(0)")
    stamp(3)
    E("s_barrier")
    srd(48, 24, None, 256)
    E(f"s_mov_b32 {sSPIN}, 0x40000")
    E("s_cmp_eq_u32 s35, 1\ns_cbranch_scc1 L_ffn2")
    E("s_cmp_lg_u32 s35, 0\ns_cbranch_scc1 L_wo")
    E(f"s_cmp_ge_u32 {sJ}, 28\ns_cbranch_scc1 L_arrive")
    E(f"s_mul_i32 s45, {sX}, 224\ns_lshl_b32 s46, {sJ}, 3\ns_add_u32 s45, s45, s46")
    E("v_lshlrev_b32 v4, 6, v0")
    for t in range(4): E(f"buffer_load_dwordx4 v[{32+4*t}:{35+4*t}], v4, s[36:39], 0 offen offset:{16*t}")
    E(f"s_lshl_b32 {sT}, s45, 1\ns_sub_u32 {sT2}, {512*3584}, {sT}")
    srd(40, 16, sT, sT2); srd(56, 18, sT, sT2)
    E("v_mul_u32_u24 v6, 0xe00, v0")
    for i in range(8):
        E(f"s_mov_b32 s44, {i*64*3584}")
        E(f"buffer_load_dwordx4 v[{WB+8*i}:{WB+8*i+3}], v6, s[40:43], s44 offen {ffl}")
        E(f"buffer_load_dwordx4 v[{WB+8*i+4}:{WB+8*i+7}], v6, s[56:59], s44 offen {ffl}")
    E("s_waitcnt vmcnt(16)")
    for e in range(16): E(f"v_lshlrev_b32 v{48+2*e}, 16, v{32+e}\nv_and_b32 v{49+2*e}, 0xffff0000, v{32+e}")
    E("v_add_f32 v28, v48, v49\nv_add_f32 v29, v50, v51")
    for e in range(4, 32): E(f"v_add_f32 v{28+(e&1)}, v{28+(e&1)}, v{48+e}")
    E("v_add_f32 v28, v28, v29")
    row_allreduce("v_add_f32", "v28")
    E("v_mul_f32 v28, 0x3b000000, v28\nv_mov_b32 v29, 0\nv_mov_b32 v30, 0")
    for e in range(32): E(f"v_sub_f32 v31, v{48+e}, v28\nv_fmac_f32 v{29+(e&1)}, v31, v31")
    E("v_add_f32 v29, v29, v30")
    row_allreduce("v_add_f32", "v29")
    ln_finish("v28", "v29")
    for e in range(32): E(f"v_sub_f32 v{48+e}, v{48+e}, v28\nv_cvt_pk_bf16_f32 v{48+e}, 0, v{48+e}\nv_mul_f32 v{48+e}, v{48+e}, v29")
    for e in range(16): E(f"v_cvt_pk_bf16_f32 v{32+e}, v{48+2*e}, v{49+2*e}")
    for t in range(4): E(f"ds_write_b128 v4, v[{32+4*t}:{35+4*t}] offset:{XN+16*t}")
    E("v_lshlrev_b32 v6, 5, v0")
    for i in range(8):
        E(f"s_waitcnt vmcnt({14-2*i})")
        E(f"ds_write_b128 v6, v[{WB+8*i}:{WB+8*i+3}] offset:{WT+2048*i}\nds_write_b128 v6, v[{WB+8*i+4}:{WB+8*i+7}] offset:{WT+2048*i+16}")
    E("v_lshlrev_b32 v6, 8, v1\nv_lshl_add_u32 v6, v2, 3, v6")
    E("v_and_b32 v7, 3, v0\nv_lshlrev_b32 v7, 10, v7\nv_lshl_add_u32 v7, v1, 4, v7")
    E("s_waitcnt lgkmcnt(0)")
    for s0 in range(0, 16, 4):
        for s in range(s0, s0+4):
            r = 32 + 8*(s & 3)
            E(f"ds_read_b64_tr_b16 v[{r}:{r+1}], v6 offset:{WT+1024*s}\nds_read_b64_tr_b16 v[{r+2}:{r+3}], v6 offset:{WT+1024*s+128}")
            E(f"ds_read_b128 v[{r+4}:{r+7}], v7 offset:{XN+64*s}")
        E("s_waitcnt lgkmcnt(0)")
        for s in range(s0, s0+4):
            r = 32 + 8*(s & 3)
            E(f"v_mfma_f32_16x16x32_bf16 v[{AC}:{AC+3}], v[{r+4}:{r+7}], v[{r}:{r+3}], " + ("0" if s == 0 else f"v[{AC}:{AC+3}]"))
        E("s_nop 3")
    for r in range(1, 4): E(f"v_mov_b32_dpp v{AC}, v{AC+r} quad_perm:[0,1,2,3] row_mask:{1<<r:#x} bank_mask:0xf")
    E(f"v_cvt_pk_bf16_f32 v28, 0, v{AC}\nv_max_f32 v29, 0, v28")
    E(f"v_mul_f32_dpp v29, v28, v29 row_ror:8 {DPPF}\nv_cvt_pk_bf16_f32 v29, 0, v29")
    E(f"v_mul_u32_u24 v6, 0x1c00, v1\nv_lshl_add_u32 v6, v2, 2, v6\ns_lshl_b32 s45, s45, 2\ns_add_u32 s45, s45, {HB}")
    E("s_mov_b32 exec_lo, 0x00ff00ff\ns_mov_b32 exec_hi, 0x00ff00ff")
    E(f"buffer_store_dword v29, v6, s[52:55], s45 offen {hs}")
    E.fence()
    E.label("L_arrive")
    E("s_mov_b64 exec, 1\nv_mov_b32 v6, 1\ns_waitcnt vmcnt(0)")
    E("buffer_atomic_add v6, off, s[48:51], 0 sc0 sc1")
    E("s_waitcnt vmcnt(0)\nv_readfirstlane_b32 s45, v6\ns_mov_b64 exec, -1")
    stamp(4)
    E("s_cmp_lg_u32 s45, 0xff\ns_cbranch_scc1 L_wo")
    E("v_lshlrev_b32 v6, 12, v0\nv_mov_b32 v7, 1")
    for i in range(4):
        E(f"s_mov_b32 s45, {i*64*REC}\nbuffer_store_dword v7, v6, s[52:55], s45 offen offset:3072 {hs}")
    E("s_branch L_wo")
    def wait_counter(lbl):
        E.fence()
        E.label(lbl)
        E(f"buffer_load_dword v6, off, s[52:55], {sP} offset:3072 {hs}\ns_waitcnt vmcnt(0)")
        E("v_readfirstlane_b32 s45, v6")
        E(f"s_cmp_eq_u32 s45, 1\ns_cbranch_scc1 {lbl}_ok")
        E(f"s_sleep 16\ns_sub_u32 {sSPIN}, {sSPIN}, 1\ns_cmp_gt_i32 {sSPIN}, 0\ns_cbranch_scc1 {lbl}")
        E.label(lbl + "_ok")
    E.label("L_ffn2")
    E(f"s_lshl_b32 s46, {sX}, 3\ns_and_b32 s45, {sJ}, 7\ns_add_u32 s46, s46, s45\ns_lshl_b32 {sT}, s46, 4")
    E(f"s_sub_u32 {sT2}, {1792*1024}, {sT}")
    srd(40, 20, sT, sT2)
    E(f"s_lshr_b32 s47, {sJ}, 3")
    E(f"s_lshl_b32 s72, s47, 10\ns_add_u32 s72, s72, {sT}")
    E("v_and_b32 v7, 7, v0\nv_lshlrev_b32 v33, 1, v7")
    E("buffer_load_ushort v34, v33, s[36:39], s72 offen")
    E("v_lshlrev_b32 v4, 12, v0")
    for i in range(7):
        E(f"s_mov_b32 s44, {i*256*1024}")
        for t in range(4):
            r = WB + 16*i + 4*t
            E(f"buffer_load_dwordx4 v[{r}:{r+3}], v4, s[40:43], s44 offen offset:{1024*t} {ffl}")
        if i >= 1: E("s_waitcnt vmcnt(4)")
    E(f"v_lshrrev_b32 v35, 3, v0\nv_lshlrev_b32 v35, 12, v35\nv_lshl_add_u32 v35, v7, 2, v35\ns_lshl_b32 s45, {sT}, 1\nv_add_u32 v35, s45, v35")
    E("s_lshl_b32 s64, s47, 18")
    for t in range(1, 8): E(f"s_add_u32 s{64+t}, s{63+t}, 0x8000")
    wait_counter("L_cnt1")
    E(f"s_mul_i32 s45, s47, 7168\ns_add_u32 s45, s45, {HB}\ns_add_u32 s46, s45, 4096")
    for i in range(7):
        E(f"buffer_load_dwordx4 v[{48+4*i}:{51+4*i}], v5, s[52:55], {'s45' if i < 4 else 's46'} offen offset:{1024*(i&3)} {hs}")
    for e in range(8): E(f"v_mov_b32 v{40+e}, 0")
    E("v_lshlrev_b32 v34, 16, v34")
    E("s_waitcnt vmcnt(0)")
    for i in range(7):
        for t in range(4):
            r = WB + 16*i + 4*t; hh = 48 + 4*i + t
            for e in range(4):
                E(f"v_lshlrev_b32 v28, 16, v{r+e}\nv_and_b32 v29, 0xffff0000, v{r+e}")
                E(f"v_fmac_f32 v{40+2*e}, v{hh}, v28\nv_fmac_f32 v{41+2*e}, v{hh}, v29")
    for m in ("quad_perm:[1,0,3,2]", "quad_perm:[2,3,0,1]", "row_half_mirror", "row_mirror"):
        for e in range(8): E(f"v_add_f32_dpp v{40+e}, v{40+e}, v{40+e} {m} {DPPF}")
    for e in range(1, 8): E(f"v_cmp_eq_u32 vcc, {e}, v7\nv_cndmask_b32 v40, v40, v{40+e}, vcc")
    xrow_allreduce("v_add_f32", "v40", "v41")
    E(f"v_cvt_pk_bf16_f32 v40, 0, v40\nv_mul_f32 v41, 0xbfb8aa3b, v40\nv_exp_f32 v41, v41\nv_add_f32 v41, 1.0, v41")
    E("v_rcp_f32 v41, v41\nv_mul_f32 v41, v40, v41\nv_cvt_pk_bf16_f32 v32, 0, v41")
    stamp(4)
    E.fence()
    E.label("L_wo")
    E(f"s_lshl_b32 {sT}, {sH}, 17")
    srd(40, 12, sT, 0x20000)
    E(f"s_lshl_b32 s45, s35, 8\nv_lshlrev_b32 v6, 15, v1\nv_lshl_add_u32 v6, v2, 4, v6\nv_add_u32 v6, s45, v6\ns_lshl_b32 s44, {sROT}, 10")
    for i in range(32):
        if i >= DO: E(f"s_waitcnt vmcnt({DO-1})")
        E(f"buffer_load_dwordx4 v[{WB+4*i}:{WB+4*i+3}], v6, s[40:43], s44 offen {wfl}")
        if i < 31: E("s_add_u32 s44, s44, 0x400\ns_and_b32 s44, s44, 0x7fff")
    E("s_waitcnt vmcnt(0)")
    stamp(5)
    E("s_cmp_lg_u32 s35, 2\ns_cbranch_scc1 L_tail")
    E.label("L_ml")
    E("s_sleep 8\nds_read_b64 v[28:29], v9\ns_waitcnt lgkmcnt(0)")
    E("v_max_u32 v30, v28, v29\nv_cmp_eq_u32 vcc, -1, v30\ns_nop 4")
    E("s_cbranch_vccz L_ml_ok")
    E(f"s_sub_u32 {sSPIN}, {sSPIN}, 1\ns_cmp_gt_i32 {sSPIN}, 0\ns_cbranch_scc1 L_ml")
    E.label("L_ml_ok")
    E(f"v_max_f32_dpp v30, v28, v28 quad_perm:[1,0,3,2] {DPPF}\nv_max_f32_dpp v30, v30, v30 quad_perm:[2,3,0,1] {DPPF}")
    E("v_sub_f32 v31, v28, v30\nv_exp_f32 v31, v31\nv_mul_f32 v31, v31, v29")
    E(f"v_add_f32_dpp v31, v31, v31 quad_perm:[1,0,3,2] {DPPF}\nv_add_f32_dpp v31, v31, v31 quad_perm:[2,3,0,1] {DPPF}")
    E("v_min_u32 v30, -2, v30\nv_min_u32 v31, -2, v31")
    wait_counter("L_cnt2")
    E("s_mov_b64 exec, 1")
    E(f"buffer_store_dwordx2 v[30:31], off, s[52:55], {sP} offset:2048 {hs}")
    E(f"s_mov_b64 exec, -1\ns_xor_b32 s45, {sP}, 0x1000")
    E.label("L_pm")
    E(f"buffer_load_dwordx2 v[36:37], off, s[52:55], s45 offset:2048 {hs}\ns_waitcnt vmcnt(0)")
    E("v_max_u32 v38, v36, v37\nv_cmp_eq_u32 vcc, -1, v38\ns_nop 4")
    E("s_cbranch_vccz L_pm_ok")
    E(f"s_sleep 8\ns_sub_u32 {sSPIN}, {sSPIN}, 1\ns_cmp_gt_i32 {sSPIN}, 0\ns_cbranch_scc1 L_pm")
    E.label("L_pm_ok")
    E("v_max_f32 v38, v30, v36\nv_sub_f32 v30, v30, v38\nv_sub_f32 v36, v36, v38\nv_sub_f32 v28, v28, v38")
    E("v_exp_f32 v30, v30\nv_exp_f32 v36, v36\nv_exp_f32 v28, v28")
    E("v_mul_f32 v31, v31, v30\nv_fmac_f32 v31, v37, v36\nv_rcp_f32 v31, v31\nv_mul_f32 v28, v28, v31")
    E(f"v_and_b32 v29, 3, v0\nv_lshlrev_b32 v29, 2, v29\nds_write_b32 v29, v28 offset:{FW}")
    E("s_waitcnt lgkmcnt(0)")
    stamp(6)
    E.fence()
    E.label("L_tail")
    E("v_lshlrev_b32 v3, 2, v3\nv_mov_b32 v4, 0")
    E("s_barrier")
    stamp(7)
    E(f"ds_read_b128 v[28:31], v4 offset:{FW}")
    for w in range(4): E(f"ds_read_b64 v[{40+2*w}:{41+2*w}], v3 offset:{OP+512*w}")
    E("s_waitcnt lgkmcnt(0)")
    E("v_mul_f32 v10, v28, v40\nv_mul_f32 v11, v28, v41")
    for w in range(1, 4): E(f"v_fmac_f32 v10, v{28+w}, v{40+2*w}\nv_fmac_f32 v11, v{28+w}, v{41+2*w}")
    E("v_cvt_pk_bf16_f32 v10, v10, v10\nv_cvt_pk_bf16_f32 v11, v11, v11")
    project(("v10", "v11"), None, 0)
    E("s_mov_b32 exec_hi, 0")
    for r in range(4): E(f"v_min_u32 v{AC+r}, -2, v{AC+r}")
    E(f"buffer_store_dwordx4 v[{AC}:{AC+3}], v8, s[52:55], {sP} offen {hs}")
    E("s_mov_b32 exec_hi, -1")
    stamp(8)
    E("s_cmp_lg_u32 s35, 1\ns_cbranch_scc1 L_done")
    srd(40, 22, None, 4096)
    E.label("L_poll")
    for t in range(8): E(f"buffer_load_dword v{40+t}, v35, s[52:55], s{64+t} offen {hs}")
    E("s_waitcnt vmcnt(0)")
    E("v_max3_u32 v28, v40, v41, v42\nv_max3_u32 v29, v43, v44, v45\nv_max3_u32 v28, v28, v46, v47\nv_max_u32 v28, v28, v29")
    E("v_cmp_eq_u32 vcc, -1, v28")
    E("v_add_f32 v40, v40, v41\nv_add_f32 v42, v42, v43\nv_add_f32 v44, v44, v45\nv_add_f32 v46, v46, v47\nv_add_f32 v40, v40, v42")
    E("s_cbranch_vccz L_poll_ok")
    E(f"s_sub_u32 {sSPIN}, {sSPIN}, 1\ns_cmp_gt_i32 {sSPIN}, 0\ns_cbranch_scc1 L_poll")
    E.label("L_poll_ok")
    E("v_add_f32 v44, v44, v46\nv_add_f32 v40, v40, v44")
    E(f"v_add_f32_dpp v40, v40, v40 row_ror:8 {DPPF}")
    xrow_allreduce("v_add_f32", "v40", "v41")
    E("v_cvt_pk_bf16_f32 v40, 0, v40\nv_mul_f32 v40, v40, v32\nv_cvt_pk_bf16_f32 v40, 0, v40\nv_add_f32 v40, v40, v34\nv_cvt_pk_bf16_f32 v40, v40, v40")
    E("s_mov_b64 exec, 0xff")
    E("buffer_store_short v40, v33, s[40:43], s72 offen")
    stamp(9)
    E.fence()
    E.label("L_done")
    stamp_flush(list(range(10)))
    E.label("L_end")
    E("s_endpgm")
    E.raw(f""".section .rodata,"a"
.p2align 6
.amdhsa_kernel {KN}
  .amdhsa_next_free_vgpr 256
  .amdhsa_next_free_sgpr 102
  .amdhsa_accum_offset 256
  .amdhsa_group_segment_fixed_size 0
  .amdhsa_kernarg_size 96
  .amdhsa_user_sgpr_count 2
  .amdhsa_user_sgpr_kernarg_segment_ptr 1
  .amdhsa_system_sgpr_workgroup_id_x 1
.end_amdhsa_kernel""")
    return E.text()

if __name__ == "__main__":
    kw = eval("dict(" + (sys.argv[2] if len(sys.argv) > 2 else "") + ")")
    open(sys.argv[1], "w").write(gen(**kw))
```

```python
import sys
from emit import Emit
KN = "recurrent_scan__mha_block_cached__glu_gated_reglu__decode_kernel"
DPPF = "row_mask:0xf bank_mask:0xf"
QP, OP, ML, FW, XN, WT = 0, 2048, 4096, 4160, 8192, 16384
LDS_BYTES = 32768
REC = 4096
HB = 256 * REC
STAMP = 16 << 20
WS_BYTES = 32 << 20
LOG2E = 0x3fb8aa3b
SCALE = 0x3db504f3
EPS = 0x3727c5ac

def gen(D=6, R=40, DH=10, DO=4, kv="nt", wfl="nt", ffl="nt", inter=False, stamps=False, cpf=True, hs="sc1", early=0, header="", diag_spin=0):
    E = Emit()
    HOFF = 16384 if inter else 524288
    GSTR = 32768 if inter else 16384
    sX, sJ, sH, sB, sHALF, sP, sROT, sT, sT2, sSPIN = "s28","s29","s30","s31","s32","s33","s34","s60","s61","s62"
    nst = [0]
    def stamp(i):
        if stamps: E(f"s_memrealtime s[{76+2*i}:{77+2*i}]")
    def stamp_flush(n):
        if not stamps: return
        E("s_waitcnt lgkmcnt(0)")
        E("s_getreg_b32 s63, hwreg(HW_REG_XCC_ID)")
        E("s_mov_b32 s56, s26\ns_and_b32 s57, s27, 0xffff")
        E(f"s_mov_b32 s58, {WS_BYTES}\ns_mov_b32 s59, 0x20000")
        E(f"s_lshl_b32 {sT}, s2, 3\ns_add_u32 {sT}, {sT}, s3\ns_lshl_b32 {sT}, {sT}, 6\ns_add_u32 {sT}, {sT}, {STAMP}")
        E("s_mov_b64 exec, 1")
        for i in range(12):
            E(f"v_mov_b32 v{4+i}, " + (f"s{76+2*i}" if i in n else "0"))
        E("v_mov_b32 v16, s63\nv_mov_b32 v17, 0\nv_mov_b32 v18, 0\nv_mov_b32 v19, 0")
        for i in range(4):
            E(f"buffer_store_dwordx4 v[{4+4*i}:{7+4*i}], off, s[56:59], {sT} offset:{16*i}")
    def srd(r, ptr, off=None, size=0):
        if off is None:
            E(f"s_mov_b32 s{r}, s{ptr}\ns_and_b32 s{r+1}, s{ptr+1}, 0xffff")
        else:
            E(f"s_add_u32 s{r}, s{ptr}, {off}\ns_addc_u32 s{r+1}, s{ptr+1}, 0\ns_and_b32 s{r+1}, s{r+1}, 0xffff")
        E(f"s_mov_b32 s{r+2}, {size}\ns_mov_b32 s{r+3}, 0x20000")
    def row_allreduce(op, v):
        for m in ("quad_perm:[1,0,3,2]", "quad_perm:[2,3,0,1]", "row_half_mirror", "row_mirror"):
            E(f"{op}_dpp {v}, {v}, {v} {m} {DPPF}")
    def xrow_allreduce(op, v, t):
        for sw in ("v_permlane16_swap_b32", "v_permlane32_swap_b32"):
            E(f"v_mov_b32 {t}, {v}\n{sw} {v}, {t}\n{op} {v}, {v}, {t}")
    def masks(base, t):
        E(f"v_and_b32 {t}, 1, v0\nv_lshlrev_b32 {t}, 4, {t}\nv_mov_b32 v{base+3}, 0xffff\nv_lshlrev_b32 {t}, {t}, v{base+3}")
        E(f"v_bfe_u32 v{base+3}, v0, 1, 3")
        for jx in range(4):
            E(f"v_cmp_eq_u32 vcc, {jx}, v{base+3}\nv_cndmask_b32 v{base+jx}, 0, {t}, vcc")
    def masked_mfma(acc, pp, bc, breg, abuf, mbase, first=False):
        for jx in range(4):
            E(f"v_and_b32_dpp v{abuf+jx}, {pp}, v{mbase+jx} row_newbcast:{bc} {DPPF}")
        return f"v_mfma_f32_16x16x32_bf16 v[{acc}:{acc+3}], v[{abuf}:{abuf+3}], v[{breg}:{breg+3}], " + ("0" if first else f"v[{acc}:{acc+3}]")

    if header: E.raw(header.rstrip("\n"))
    E.raw(f"; @launch grid=(256,1,1) block=(512,1,1) lds={LDS_BYTES}")
    E.raw('.amdgcn_target "amdgcn-amd-amdhsa--gfx950"\n.text')
    E.raw(f".globl {KN}\n.p2align 8\n.type {KN},@function\n{KN}:")
    E("s_cmp_ge_u32 s2, 0x100\ns_cbranch_scc1 L_end")
    E("s_load_dwordx16 s[4:19], s[0:1], 0")
    E("s_load_dwordx8 s[20:27], s[0:1], 64")
    stamp(0)
    if diag_spin: E("s_memrealtime s[96:97]")
    E("v_lshrrev_b32 v1, 6, v0\nv_and_b32 v0, 63, v0\nv_readfirstlane_b32 s3, v1")
    E(f"s_and_b32 {sX}, s2, 7\ns_lshr_b32 {sJ}, s2, 3")
    E(f"s_and_b32 {sH}, {sJ}, 24\ns_add_u32 {sH}, {sH}, {sX}")
    E(f"s_bfe_u32 {sB}, {sJ}, 0x20001\ns_and_b32 {sHALF}, {sJ}, 1")
    E(f"s_lshl_b32 {sP}, {sB}, 5\ns_add_u32 {sP}, {sP}, {sH}")
    E("v_lshrrev_b32 v1, 4, v0")
    E("s_cmp_ge_u32 s3, 4\ns_cbranch_scc1 L_helper")

    RB = 256 - 4*R; SB = RB - 32; BQ = SB - 16; DB = [BQ-8, BQ-4]; OA = BQ - 12; MB = BQ - 16
    assert MB >= 20
    T1, T2, MX, LS, NM = "v8", "v9", "v10", "v11", "v12"
    E(f"s_lshl_b32 {sT}, {sP}, 20\ns_mul_i32 {sT2}, {sHALF}, {HOFF}\ns_add_u32 {sT}, {sT}, {sT2}")
    E(f"s_sub_u32 {sT2}, 0x100000, {sT2}")
    E("s_lshl_b32 s35, s3, 12")
    E("v_and_b32 v2, 3, v0\nv_lshlrev_b32 v2, 4, v2\nv_lshl_add_u32 v2, v1, 6, v2")
    E("v_bfe_u32 v3, v0, 2, 2\nv_lshl_add_u32 v2, v3, 8, v2\nv_add_u32 v2, s35, v2")
    E("v_lshl_add_u32 v3, v0, 4, s35")
    E("s_waitcnt lgkmcnt(0)")
    srd(36, 6, sT, sT2); srd(40, 8, sT, sT2)
    NL = 256
    cur = [None]
    def issue(n):
        t, i = (n % 128) // 4, n % 4
        if cur[0] != t: E(f"s_mov_b32 s44, {t*GSTR}"); cur[0] = t
        r = RB + 4*(n % R)
        if n < 128: E(f"buffer_load_dwordx4 v[{r}:{r+3}], v2, s[36:39], s44 offen offset:{i*1024} {kv}")
        else:       E(f"buffer_load_dwordx4 v[{r}:{r+3}], v3, s[40:43], s44 offen offset:{i*1024} {kv}")
    st = {"issued": 0, "landed": 0}
    def wait_landed(k):
        if st["landed"] < k:
            E(f"s_waitcnt vmcnt({st['issued']-k})"); st["landed"] = k
    def paced_issue():
        n = st["issued"]
        wait_landed(n - D + 1)
        issue(n); st["issued"] += 1
    for n in range(D): paced_issue()
    masks(MB, T1)
    for i in range(16): E(f"v_mov_b32 v{BQ+i}, 0")
    E(f"v_mov_b32 {MX}, 0xff800000\nv_mov_b32 {LS}, 0")
    E("v_and_b32 v4, 3, v0\nv_lshl_add_u32 v4, v1, 2, v4\nv_lshlrev_b32 v4, 5, v4")
    E("v_and_b32 v5, 15, v0\nv_lshlrev_b32 v5, 5, v5\nv_lshl_add_u32 v5, v1, 4, v5")
    E(f"s_lshl_b32 s46, s3, 9\ns_add_u32 s46, s46, {OP}\nv_add_u32 v5, s46, v5")
    E(f"s_lshl_b32 s46, s3, 3\ns_add_u32 s46, s46, {ML}\nv_mov_b32 v6, s46")
    E(f"s_mov_b32 s47, {SCALE}\ns_mov_b32 s48, {LOG2E}")
    while st["issued"] < R - early: paced_issue()
    stamp(1)
    E("s_barrier")
    stamp(2)
    for u in range(4):
        E(f"ds_read_b128 v[{SB+8*u}:{SB+8*u+3}], v4 offset:{QP+512*u}\nds_read_b128 v[{SB+8*u+4}:{SB+8*u+7}], v4 offset:{QP+512*u+16}")
    while st["issued"] < R: paced_issue()
    E("s_waitcnt lgkmcnt(4)" if not stamps else "s_waitcnt lgkmcnt(0)")
    for e in range(8): E(f"v_add_f32 v{SB+e}, v{SB+e}, v{SB+8+e}")
    E("s_waitcnt lgkmcnt(0)")
    for e in range(8): E(f"v_add_f32 v{SB+16+e}, v{SB+16+e}, v{SB+24+e}")
    for e in range(8): E(f"v_add_f32 v{SB+e}, v{SB+e}, v{SB+16+e}")
    for e in range(4): E(f"v_cvt_pk_bf16_f32 v{SB+8+e}, v{SB+2*e}, v{SB+2*e+1}")
    for i in range(4):
        for e in range(4):
            E(f"v_mov_b32_dpp v{BQ+4*i+e}, v{SB+8+e} quad_perm:[0,1,2,3] row_mask:0xf bank_mask:{1<<i:#x}")
    def qk_post(t):
        d = DB[t & 1]
        return [f"v_mov_b32_dpp {T1}, v{d} quad_perm:[0,0,0,0] {DPPF}",
                f"v_mov_b32_dpp {T2}, v{d+2} quad_perm:[2,2,2,2] {DPPF}",
                None,
                f"v_add_f32_dpp {T1}, v{d+1}, {T1} quad_perm:[1,1,1,1] {DPPF}",
                f"v_add_f32_dpp {T2}, v{d+3}, {T2} quad_perm:[3,3,3,3] {DPPF}",
                f"v_add_f32 {T1}, {T1}, {T2}",
                None,
                f"v_cvt_pk_bf16_f32 {T1}, 0, {T1}",
                f"v_mul_f32 {T1}, s47, {T1}",
                None,
                f"v_cvt_pk_bf16_f32 v{SB+t}, 0, {T1}",
                f"v_max_f32 {MX}, {MX}, v{SB+t}"]
    def expo(t):
        E(f"v_fma_f32 {T1}, v{SB+t}, s48, {NM}\nv_exp_f32 {T1}, {T1}")
        E(f"v_add_f32 {LS}, {LS}, {T1}\nv_cvt_pk_bf16_f32 v{SB+t}, {T1}, {T1}")
    def group(gi):
        wait_landed(4*gi + 4)
        if gi < 32:
            t = gi; d = DB[t & 1]
            mf = []
            for i in range(4):
                r = RB + 4*((4*gi+i) % R)
                mf.append(f"v_mfma_f32_16x16x32_bf16 v[{d}:{d+3}], v[{r}:{r+3}], v[{BQ+4*i}:{BQ+4*i+3}], " + ("0" if i == 0 else f"v[{d}:{d+3}]"))
            E(mf.pop(0))
            if t > 0:
                for x in qk_post(t-1): E(x if x else mf.pop(0))
            for x in mf: E(x)
            if t == 31:
                for x in qk_post(31):
                    if x: E(x)
                E(f"v_max_f32_dpp {MX}, {MX}, {MX} row_ror:4 {DPPF}\nv_max_f32_dpp {MX}, {MX}, {MX} row_ror:8 {DPPF}")
                xrow_allreduce("v_max_f32", MX, T1)
                E(f"v_mul_f32 {MX}, s48, {MX}\nv_sub_f32 {NM}, 0, {MX}")
                expo(0); expo(1)
                stamp(3)
        else:
            t = gi - 32
            pend = None
            for i in range(4):
                r = RB + 4*((4*gi+i) % R)
                m = masked_mfma(OA, f"v{SB+t}", 4*i, r, BQ+4*i, MB, first=(t == 0 and i == 0))
                if pend: E(pend)
                pend = m
            if t < 15: expo(2*t+2)
            E(pend)
            if t < 15: expo(2*t+3)
            if t == 15:
                E(f"v_add_f32_dpp {LS}, {LS}, {LS} row_ror:4 {DPPF}\nv_add_f32_dpp {LS}, {LS}, {LS} row_ror:8 {DPPF}")
                xrow_allreduce("v_add_f32", LS, T1)
                E(f"v_min_u32 {MX}, -2, {MX}\nv_min_u32 {LS}, -2, {LS}")
                E(f"ds_write_b64 v6, v[10:11]")
    done = 0
    while done < 64:
        if st["issued"] < NL and st["issued"] - 4*done <= R - 1 and not (st["issued"] - 4*done >= D + 4 and (st["issued"] % 2 == 0) and st.get("last") == "i"):
            paced_issue(); st["last"] = "i"
            if st["issued"] - 4*done >= D + 4 and st["issued"] % 2 == 0:
                group(done); done += 1; st["last"] = "g"
        else:
            group(done); done += 1; st["last"] = "g"
    E("s_mov_b32 exec_hi, 0")
    E(f"ds_write_b128 v5, v[{OA}:{OA+3}]")
    E("s_waitcnt lgkmcnt(0)")
    stamp(4)
    E("s_barrier")
    stamp_flush([0,1,2,3,4])
    E("s_endpgm")

    E.label("L_helper")
    WB = 128; MB = 12; AB = [16, 20]; AC = 24
    E("s_sub_u32 s35, s3, 4")
    E(f"s_and_b32 {sROT}, {sJ}, 7\ns_lshl_b32 {sROT}, {sROT}, 2")
    E(f"s_lshl_b32 {sP}, {sP}, 1\ns_add_u32 {sP}, {sP}, {sHALF}\ns_lshl_b32 {sP}, {sP}, 12")
    E("v_and_b32 v2, 15, v0")
    E(f"v_lshl_add_u32 v3, v2, 1, {sROT}\nv_and_b32 v3, 31, v3\nv_lshl_add_u32 v3, v1, 5, v3")
    E("s_lshl_b32 s45, s35, 8\nv_lshl_add_u32 v4, v3, 1, s45")
    E("v_lshlrev_b32 v5, 4, v0")
    E("s_lshl_b32 s46, s35, 20\nv_lshlrev_b32 v6, 18, v1\nv_lshl_add_u32 v6, v2, 4, v6\nv_add_u32 v6, s46, v6")
    E(f"s_lshl_b32 s47, {sB}, 10\ns_lshl_b32 {sT}, {sH}, 8\ns_sub_u32 {sT2}, 0x400000, {sT}\ns_lshl_b32 s44, {sROT}, 13")
    E("s_waitcnt lgkmcnt(0)")
    srd(36, 4, None, 4096); srd(40, 10, sT, sT2)
    E("buffer_load_dwordx4 v[28:31], v5, s[36:39], s47 offen")
    E("buffer_load_dword v7, v4, s[36:39], s47 offen")
    def wq_issue(i):
        E(f"buffer_load_dwordx4 v[{WB+4*i}:{WB+4*i+3}], v6, s[40:43], s44 offen {wfl}")
        if i < 31: E("s_add_u32 s44, s44, 0x2000\ns_and_b32 s44, s44, 0x3ffff")
    for i in range(DH): wq_issue(i)
    srd(52, 26, None, WS_BYTES)
    for e in range(4): E(f"v_mov_b32 v{16+e}, -1")
    E(f"s_lshl_b32 s45, s35, 10\ns_add_u32 s45, s45, {sP}")
    E(f"buffer_store_dwordx4 v[16:19], v5, s[52:55], s45 offen {hs}")
    extra = 1
    if cpf:
        E("s_getpc_b64 s[56:57]")
        E.label("L_pc")
        E(f"s_sub_u32 s56, s56, L_pc-{KN}\ns_subb_u32 s57, s57, 0\ns_and_b32 s57, s57, 0xffff")
        E(f"s_mov_b32 s58, L_end-{KN}\ns_mov_b32 s59, 0x20000")
        E(f"s_lshl_b32 s45, {sJ}, 2\ns_add_u32 s45, s45, s35\ns_lshl_b32 s45, s45, 8\nv_lshlrev_b32 v40, 2, v0")
        E("buffer_load_dword v41, v40, s[56:59], s45 offen")
        extra += 1
    masks(MB, "v8")
    E(f"s_waitcnt vmcnt({DH+extra})")
    stamp(1)
    for e in range(4): E(f"v_lshlrev_b32 v{32+2*e}, 16, v{28+e}\nv_and_b32 v{33+2*e}, 0xffff0000, v{28+e}")
    E("v_add_f32 v8, v32, v33\nv_add_f32 v9, v34, v35\nv_add_f32 v10, v36, v37\nv_add_f32 v11, v38, v39")
    E("v_add_f32 v8, v8, v9\nv_add_f32 v10, v10, v11\nv_add_f32 v8, v8, v10")
    row_allreduce("v_add_f32", "v8"); xrow_allreduce("v_add_f32", "v8", "v9")
    E("v_mul_f32 v8, 0x3b000000, v8")
    for e in range(8): E(f"v_sub_f32 v{32+e}, v{32+e}, v8")
    E("v_mul_f32 v9, v32, v32\nv_mul_f32 v10, v33, v33")
    for e in range(2, 8): E(f"v_fmac_f32 v{9+(e&1)}, v{32+e}, v{32+e}")
    E("v_add_f32 v9, v9, v10")
    row_allreduce("v_add_f32", "v9"); xrow_allreduce("v_add_f32", "v9", "v10")
    def ln_finish(mean, var):
        E(f"v_mul_f32 {var}, 0x3b000000, {var}\nv_cvt_pk_bf16_f32 {mean}, 0, {mean}\nv_cvt_pk_bf16_f32 {var}, 0, {var}")
        E(f"v_add_f32 {var}, {EPS:#x}, {var}\nv_cvt_pk_bf16_f32 {var}, 0, {var}\nv_sqrt_f32 {var}, {var}")
        E(f"v_cvt_pk_bf16_f32 {var}, 0, {var}\nv_rcp_f32 {var}, {var}")
    ln_finish("v8", "v9")
    E("v_lshlrev_b32 v10, 16, v7\nv_and_b32 v11, 0xffff0000, v7")
    for r in ("v10", "v11"):
        E(f"v_sub_f32 {r}, {r}, v8\nv_cvt_pk_bf16_f32 {r}, 0, {r}\nv_mul_f32 {r}, {r}, v9\nv_cvt_pk_bf16_f32 {r}, {r}, {r}")
    stamp(2)
    def project(pp, issue_fn, depth, extra=0):
        pend = None
        for i in range(32):
            m = masked_mfma(AC, pp[i & 1], i >> 1, WB+4*i, AB[i & 1], MB, first=(i == 0))
            if pend: E(pend)
            if issue_fn:
                E(f"s_waitcnt vmcnt({min(32, i+depth) - i - 1 + (extra if i < depth else 0)})")
                if i + depth < 32: issue_fn(i + depth)
            pend = m
        E(pend)
    project(("v10", "v11"), wq_issue, DH, extra)
    E("s_waitcnt vmcnt(0)")
    E("v_lshlrev_b32 v8, 5, v2\nv_lshl_add_u32 v8, v1, 4, v8\ns_lshl_b32 s46, s35, 9\nv_add_u32 v8, s46, v8")
    E(f"v_and_b32 v9, 3, v0\nv_lshlrev_b32 v9, 3, v9\nv_add_u32 v9, {ML}, v9\nv_mov_b32 v10, -1\nv_mov_b32 v11, -1")
    E("s_mov_b32 exec_hi, 0")
    E(f"ds_write_b128 v8, v[{AC}:{AC+3}] offset:{QP}")
    E("ds_write_b64 v9, v[10:11]")
    E("s_mov_b32 exec_hi, -1")
    E("s_waitcnt lgkmcnt(0)")
    stamp(3)
    E("s_barrier")
    srd(48, 24, None, 256)
    E(f"s_mov_b32 {sSPIN}, 0x40000")
    E("s_cmp_eq_u32 s35, 1\ns_cbranch_scc1 L_ffn2")
    E("s_cmp_lg_u32 s35, 0\ns_cbranch_scc1 L_wo")
    E(f"s_cmp_ge_u32 {sJ}, 28\ns_cbranch_scc1 L_arrive")
    E(f"s_mul_i32 s45, {sX}, 224\ns_lshl_b32 s46, {sJ}, 3\ns_add_u32 s45, s45, s46")
    E("v_lshlrev_b32 v4, 6, v0")
    for t in range(4): E(f"buffer_load_dwordx4 v[{32+4*t}:{35+4*t}], v4, s[36:39], 0 offen offset:{16*t}")
    E(f"s_lshl_b32 {sT}, s45, 1\ns_sub_u32 {sT2}, {512*3584}, {sT}")
    srd(40, 16, sT, sT2); srd(56, 18, sT, sT2)
    E("v_mul_u32_u24 v6, 0xe00, v0")
    for i in range(8):
        E(f"s_mov_b32 s44, {i*64*3584}")
        E(f"buffer_load_dwordx4 v[{WB+8*i}:{WB+8*i+3}], v6, s[40:43], s44 offen {ffl}")
        E(f"buffer_load_dwordx4 v[{WB+8*i+4}:{WB+8*i+7}], v6, s[56:59], s44 offen {ffl}")
    E("s_waitcnt vmcnt(16)")
    for e in range(16): E(f"v_lshlrev_b32 v{48+2*e}, 16, v{32+e}\nv_and_b32 v{49+2*e}, 0xffff0000, v{32+e}")
    E("v_add_f32 v28, v48, v49\nv_add_f32 v29, v50, v51")
    for e in range(4, 32): E(f"v_add_f32 v{28+(e&1)}, v{28+(e&1)}, v{48+e}")
    E("v_add_f32 v28, v28, v29")
    row_allreduce("v_add_f32", "v28")
    E("v_mul_f32 v28, 0x3b000000, v28\nv_mov_b32 v29, 0\nv_mov_b32 v30, 0")
    for e in range(32): E(f"v_sub_f32 v31, v{48+e}, v28\nv_fmac_f32 v{29+(e&1)}, v31, v31")
    E("v_add_f32 v29, v29, v30")
    row_allreduce("v_add_f32", "v29")
    ln_finish("v28", "v29")
    for e in range(32): E(f"v_sub_f32 v{48+e}, v{48+e}, v28\nv_cvt_pk_bf16_f32 v{48+e}, 0, v{48+e}\nv_mul_f32 v{48+e}, v{48+e}, v29")
    for e in range(16): E(f"v_cvt_pk_bf16_f32 v{32+e}, v{48+2*e}, v{49+2*e}")
    for t in range(4): E(f"ds_write_b128 v4, v[{32+4*t}:{35+4*t}] offset:{XN+16*t}")
    E("v_lshlrev_b32 v6, 5, v0")
    for i in range(8):
        E(f"s_waitcnt vmcnt({14-2*i})")
        E(f"ds_write_b128 v6, v[{WB+8*i}:{WB+8*i+3}] offset:{WT+2048*i}\nds_write_b128 v6, v[{WB+8*i+4}:{WB+8*i+7}] offset:{WT+2048*i+16}")
    E("v_lshlrev_b32 v6, 8, v1\nv_lshl_add_u32 v6, v2, 3, v6")
    E("v_and_b32 v7, 3, v0\nv_lshlrev_b32 v7, 10, v7\nv_lshl_add_u32 v7, v1, 4, v7")
    E("s_waitcnt lgkmcnt(0)")
    for s0 in range(0, 16, 4):
        for s in range(s0, s0+4):
            r = 32 + 8*(s & 3)
            E(f"ds_read_b64_tr_b16 v[{r}:{r+1}], v6 offset:{WT+1024*s}\nds_read_b64_tr_b16 v[{r+2}:{r+3}], v6 offset:{WT+1024*s+128}")
            E(f"ds_read_b128 v[{r+4}:{r+7}], v7 offset:{XN+64*s}")
        E("s_waitcnt lgkmcnt(0)")
        for s in range(s0, s0+4):
            r = 32 + 8*(s & 3)
            E(f"v_mfma_f32_16x16x32_bf16 v[{AC}:{AC+3}], v[{r+4}:{r+7}], v[{r}:{r+3}], " + ("0" if s == 0 else f"v[{AC}:{AC+3}]"))
        E("s_nop 3")
    for r in range(1, 4): E(f"v_mov_b32_dpp v{AC}, v{AC+r} quad_perm:[0,1,2,3] row_mask:{1<<r:#x} bank_mask:0xf")
    E(f"v_cvt_pk_bf16_f32 v28, 0, v{AC}\nv_max_f32 v29, 0, v28")
    E(f"v_mul_f32_dpp v29, v28, v29 row_ror:8 {DPPF}\nv_cvt_pk_bf16_f32 v29, 0, v29")
    E(f"v_mul_u32_u24 v6, 0x1c00, v1\nv_lshl_add_u32 v6, v2, 2, v6\ns_lshl_b32 s45, s45, 2\ns_add_u32 s45, s45, {HB}")
    E("s_mov_b32 exec_lo, 0x00ff00ff\ns_mov_b32 exec_hi, 0x00ff00ff")
    E(f"buffer_store_dword v29, v6, s[52:55], s45 offen {hs}")
    E.fence()
    E.label("L_arrive")
    E("s_mov_b64 exec, 1\nv_mov_b32 v6, 1\ns_waitcnt vmcnt(0)")
    E("buffer_atomic_add v6, off, s[48:51], 0 sc0 sc1")
    E("s_waitcnt vmcnt(0)\nv_readfirstlane_b32 s45, v6\ns_mov_b64 exec, -1")
    stamp(4)
    E("s_and_b32 s45, s45, 0xff\ns_cmp_lg_u32 s45, 0xff\ns_cbranch_scc1 L_wo")
    E("v_lshlrev_b32 v6, 12, v0\nv_mov_b32 v7, 1")
    for i in range(4):
        E(f"s_mov_b32 s45, {i*64*REC}\nbuffer_store_dword v7, v6, s[52:55], s45 offen offset:3072 {hs}")
    E("s_branch L_wo")
    def wait_counter(lbl):
        E.fence()
        E.label(lbl)
        E(f"buffer_load_dword v6, off, s[52:55], {sP} offset:3072 {hs}\ns_waitcnt vmcnt(0)")
        E("v_readfirstlane_b32 s45, v6")
        E(f"s_cmp_eq_u32 s45, 1\ns_cbranch_scc1 {lbl}_ok")
        E(f"s_sleep 16\ns_sub_u32 {sSPIN}, {sSPIN}, 1\ns_cmp_gt_i32 {sSPIN}, 0\ns_cbranch_scc1 {lbl}")
        E.label(lbl + "_ok")
    E.label("L_ffn2")
    E(f"s_lshl_b32 s46, {sX}, 3\ns_and_b32 s45, {sJ}, 7\ns_add_u32 s46, s46, s45\ns_lshl_b32 {sT}, s46, 4")
    E(f"s_sub_u32 {sT2}, {1792*1024}, {sT}")
    srd(40, 20, sT, sT2)
    E(f"s_lshr_b32 s47, {sJ}, 3")
    E(f"s_lshl_b32 s72, s47, 10\ns_add_u32 s72, s72, {sT}")
    E("v_and_b32 v7, 7, v0\nv_lshlrev_b32 v33, 1, v7")
    E("buffer_load_ushort v34, v33, s[36:39], s72 offen")
    E("v_lshlrev_b32 v4, 12, v0")
    for i in range(7):
        E(f"s_mov_b32 s44, {i*256*1024}")
        for t in range(4):
            r = WB + 16*i + 4*t
            E(f"buffer_load_dwordx4 v[{r}:{r+3}], v4, s[40:43], s44 offen offset:{1024*t} {ffl}")
        if i >= 1: E("s_waitcnt vmcnt(4)")
    E(f"v_lshrrev_b32 v35, 3, v0\nv_lshlrev_b32 v35, 12, v35\nv_lshl_add_u32 v35, v7, 2, v35\ns_lshl_b32 s45, {sT}, 1\nv_add_u32 v35, s45, v35")
    E("s_lshl_b32 s64, s47, 18")
    for t in range(1, 8): E(f"s_add_u32 s{64+t}, s{63+t}, 0x8000")
    wait_counter("L_cnt1")
    E(f"s_mul_i32 s45, s47, 7168\ns_add_u32 s45, s45, {HB}\ns_add_u32 s46, s45, 4096")
    for i in range(7):
        E(f"buffer_load_dwordx4 v[{48+4*i}:{51+4*i}], v5, s[52:55], {'s45' if i < 4 else 's46'} offen offset:{1024*(i&3)} {hs}")
    for e in range(8): E(f"v_mov_b32 v{40+e}, 0")
    E("v_lshlrev_b32 v34, 16, v34")
    E("s_waitcnt vmcnt(0)")
    for i in range(7):
        for t in range(4):
            r = WB + 16*i + 4*t; hh = 48 + 4*i + t
            for e in range(4):
                E(f"v_lshlrev_b32 v28, 16, v{r+e}\nv_and_b32 v29, 0xffff0000, v{r+e}")
                E(f"v_fmac_f32 v{40+2*e}, v{hh}, v28\nv_fmac_f32 v{41+2*e}, v{hh}, v29")
    for m in ("quad_perm:[1,0,3,2]", "quad_perm:[2,3,0,1]", "row_half_mirror", "row_mirror"):
        for e in range(8): E(f"v_add_f32_dpp v{40+e}, v{40+e}, v{40+e} {m} {DPPF}")
    for e in range(1, 8): E(f"v_cmp_eq_u32 vcc, {e}, v7\nv_cndmask_b32 v40, v40, v{40+e}, vcc")
    xrow_allreduce("v_add_f32", "v40", "v41")
    E(f"v_cvt_pk_bf16_f32 v40, 0, v40\nv_mul_f32 v41, 0xbfb8aa3b, v40\nv_exp_f32 v41, v41\nv_add_f32 v41, 1.0, v41")
    E("v_rcp_f32 v41, v41\nv_mul_f32 v41, v40, v41\nv_cvt_pk_bf16_f32 v32, 0, v41")
    stamp(4)
    E.fence()
    E.label("L_wo")
    E(f"s_lshl_b32 {sT}, {sH}, 17")
    srd(40, 12, sT, 0x20000)
    E(f"s_lshl_b32 s45, s35, 8\nv_lshlrev_b32 v6, 15, v1\nv_lshl_add_u32 v6, v2, 4, v6\nv_add_u32 v6, s45, v6\ns_lshl_b32 s44, {sROT}, 10")
    for i in range(32):
        if i >= DO: E(f"s_waitcnt vmcnt({DO-1})")
        E(f"buffer_load_dwordx4 v[{WB+4*i}:{WB+4*i+3}], v6, s[40:43], s44 offen {wfl}")
        if i < 31: E("s_add_u32 s44, s44, 0x400\ns_and_b32 s44, s44, 0x7fff")
    E("s_waitcnt vmcnt(0)")
    stamp(5)
    E("s_cmp_lg_u32 s35, 2\ns_cbranch_scc1 L_tail")
    E.label("L_ml")
    E("s_sleep 8\nds_read_b64 v[28:29], v9\ns_waitcnt lgkmcnt(0)")
    E("v_max_u32 v30, v28, v29\nv_cmp_eq_u32 vcc, -1, v30\ns_nop 4")
    E("s_cbranch_vccz L_ml_ok")
    E(f"s_sub_u32 {sSPIN}, {sSPIN}, 1\ns_cmp_gt_i32 {sSPIN}, 0\ns_cbranch_scc1 L_ml")
    E.label("L_ml_ok")
    E(f"v_max_f32_dpp v30, v28, v28 quad_perm:[1,0,3,2] {DPPF}\nv_max_f32_dpp v30, v30, v30 quad_perm:[2,3,0,1] {DPPF}")
    E("v_sub_f32 v31, v28, v30\nv_exp_f32 v31, v31\nv_mul_f32 v31, v31, v29")
    E(f"v_add_f32_dpp v31, v31, v31 quad_perm:[1,0,3,2] {DPPF}\nv_add_f32_dpp v31, v31, v31 quad_perm:[2,3,0,1] {DPPF}")
    E("v_min_u32 v30, -2, v30\nv_min_u32 v31, -2, v31")
    wait_counter("L_cnt2")
    E("s_mov_b64 exec, 1")
    E(f"buffer_store_dwordx2 v[30:31], off, s[52:55], {sP} offset:2048 {hs}")
    E(f"s_mov_b64 exec, -1\ns_xor_b32 s45, {sP}, 0x1000")
    E.label("L_pm")
    E(f"buffer_load_dwordx2 v[36:37], off, s[52:55], s45 offset:2048 {hs}\ns_waitcnt vmcnt(0)")
    E("v_max_u32 v38, v36, v37\nv_cmp_eq_u32 vcc, -1, v38\ns_nop 4")
    E("s_cbranch_vccz L_pm_ok")
    E(f"s_sleep 8\ns_sub_u32 {sSPIN}, {sSPIN}, 1\ns_cmp_gt_i32 {sSPIN}, 0\ns_cbranch_scc1 L_pm")
    E.label("L_pm_ok")
    E("v_max_f32 v38, v30, v36\nv_sub_f32 v30, v30, v38\nv_sub_f32 v36, v36, v38\nv_sub_f32 v28, v28, v38")
    E("v_exp_f32 v30, v30\nv_exp_f32 v36, v36\nv_exp_f32 v28, v28")
    E("v_mul_f32 v31, v31, v30\nv_fmac_f32 v31, v37, v36\nv_rcp_f32 v31, v31\nv_mul_f32 v28, v28, v31")
    E(f"v_and_b32 v29, 3, v0\nv_lshlrev_b32 v29, 2, v29\nds_write_b32 v29, v28 offset:{FW}")
    E("s_waitcnt lgkmcnt(0)")
    stamp(6)
    E.fence()
    E.label("L_tail")
    E("v_lshlrev_b32 v3, 2, v3\nv_mov_b32 v4, 0")
    E("s_barrier")
    stamp(7)
    E(f"ds_read_b128 v[28:31], v4 offset:{FW}")
    for w in range(4): E(f"ds_read_b64 v[{40+2*w}:{41+2*w}], v3 offset:{OP+512*w}")
    E("s_waitcnt lgkmcnt(0)")
    E("v_mul_f32 v10, v28, v40\nv_mul_f32 v11, v28, v41")
    for w in range(1, 4): E(f"v_fmac_f32 v10, v{28+w}, v{40+2*w}\nv_fmac_f32 v11, v{28+w}, v{41+2*w}")
    E("v_cvt_pk_bf16_f32 v10, v10, v10\nv_cvt_pk_bf16_f32 v11, v11, v11")
    project(("v10", "v11"), None, 0)
    E("s_mov_b32 exec_hi, 0")
    for r in range(4): E(f"v_min_u32 v{AC+r}, -2, v{AC+r}")
    E(f"buffer_store_dwordx4 v[{AC}:{AC+3}], v8, s[52:55], {sP} offen {hs}")
    E("s_mov_b32 exec_hi, -1")
    stamp(8)
    E("s_cmp_lg_u32 s35, 1\ns_cbranch_scc1 L_done")
    srd(40, 22, None, 4096)
    E.label("L_poll")
    for t in range(8): E(f"buffer_load_dword v{40+t}, v35, s[52:55], s{64+t} offen {hs}")
    E("s_waitcnt vmcnt(0)")
    E("v_max3_u32 v28, v40, v41, v42\nv_max3_u32 v29, v43, v44, v45\nv_max3_u32 v28, v28, v46, v47\nv_max_u32 v28, v28, v29")
    E("v_cmp_eq_u32 vcc, -1, v28")
    E("v_add_f32 v40, v40, v41\nv_add_f32 v42, v42, v43\nv_add_f32 v44, v44, v45\nv_add_f32 v46, v46, v47\nv_add_f32 v40, v40, v42")
    E("s_cbranch_vccz L_poll_ok")
    E(f"s_sub_u32 {sSPIN}, {sSPIN}, 1\ns_cmp_gt_i32 {sSPIN}, 0\ns_cbranch_scc1 L_poll")
    E.label("L_poll_ok")
    E("v_add_f32 v44, v44, v46\nv_add_f32 v40, v40, v44")
    E(f"v_add_f32_dpp v40, v40, v40 row_ror:8 {DPPF}")
    xrow_allreduce("v_add_f32", "v40", "v41")
    E("v_cvt_pk_bf16_f32 v40, 0, v40\nv_mul_f32 v40, v40, v32\nv_cvt_pk_bf16_f32 v40, 0, v40\nv_add_f32 v40, v40, v34\nv_cvt_pk_bf16_f32 v40, v40, v40")
    E("s_mov_b64 exec, 0xff")
    E("buffer_store_short v40, v33, s[40:43], s72 offen")
    stamp(9)
    if diag_spin:
        E.label("L_diag")
        E(f"s_memrealtime s[98:99]\ns_waitcnt lgkmcnt(0)\ns_sub_u32 s98, s98, s96\ns_cmp_lt_u32 s98, {diag_spin*100}\ns_cbranch_scc1 L_diag")
    E.fence()
    E.label("L_done")
    stamp_flush(list(range(10)))
    E.label("L_end")
    E("s_endpgm")
    E.raw(f""".section .rodata,"a"
.p2align 6
.amdhsa_kernel {KN}
  .amdhsa_next_free_vgpr 256
  .amdhsa_next_free_sgpr 102
  .amdhsa_accum_offset 256
  .amdhsa_group_segment_fixed_size 0
  .amdhsa_kernarg_size 96
  .amdhsa_user_sgpr_count 2
  .amdhsa_user_sgpr_kernarg_segment_ptr 1
  .amdhsa_system_sgpr_workgroup_id_x 1
.end_amdhsa_kernel""")
    return E.text()

if __name__ == "__main__":
    kw = eval("dict(" + (sys.argv[2] if len(sys.argv) > 2 else "") + ")")
    open(sys.argv[1], "w").write(gen(**kw))
```

```python
import sys
from emit import Emit
KN = "recurrent_scan__mha_block_cached__glu_gated_reglu__decode_kernel"
DPPF = "row_mask:0xf bank_mask:0xf"
QP, OP, ML, FW, XN, WT = 0, 2048, 4096, 4160, 8192, 16384
LDS_BYTES = 32768
REC = 4096
HB = 256 * REC
STAMP = 16 << 20
WS_BYTES = 32 << 20
LOG2E = 0x3fb8aa3b
SCALE = 0x3db504f3
EPS = 0x3727c5ac

def gen(D=6, R=40, DH=10, DO=4, kv="nt", wfl="nt", ffl="nt", inter=False, stamps=False, cpf=True, hs="sc1", early=0, header="", diag_spin=0, hmap=1, DF=2, diag_first=False, abl=()):
    E = Emit()
    HOFF = 16384 if inter else 524288
    GSTR = 32768 if inter else 16384
    sX, sJ, sH, sB, sHALF, sP, sROT, sT, sT2, sSPIN = "s28","s29","s30","s31","s32","s33","s34","s60","s61","s62"
    nst = [0]
    def stamp(i):
        if stamps: E(f"s_memrealtime s[{76+2*i}:{77+2*i}]")
    def stamp_flush(n):
        if not stamps: return
        E("s_waitcnt lgkmcnt(0)")
        E("s_getreg_b32 s63, hwreg(HW_REG_XCC_ID)")
        E("s_mov_b32 s56, s26\ns_and_b32 s57, s27, 0xffff")
        E(f"s_mov_b32 s58, {WS_BYTES}\ns_mov_b32 s59, 0x20000")
        E(f"s_lshl_b32 {sT}, s2, 3\ns_add_u32 {sT}, {sT}, s3\ns_lshl_b32 {sT}, {sT}, 6\ns_add_u32 {sT}, {sT}, {STAMP}")
        E("s_mov_b64 exec, 1")
        for i in range(12):
            E(f"v_mov_b32 v{4+i}, " + (f"s{76+2*i}" if i in n else "0"))
        E("v_mov_b32 v16, s63\nv_mov_b32 v17, 0\nv_mov_b32 v18, 0\nv_mov_b32 v19, 0")
        for i in range(4):
            E(f"buffer_store_dwordx4 v[{4+4*i}:{7+4*i}], off, s[56:59], {sT} offset:{16*i}")
    def srd(r, ptr, off=None, size=0):
        if off is None:
            E(f"s_mov_b32 s{r}, s{ptr}\ns_and_b32 s{r+1}, s{ptr+1}, 0xffff")
        else:
            E(f"s_add_u32 s{r}, s{ptr}, {off}\ns_addc_u32 s{r+1}, s{ptr+1}, 0\ns_and_b32 s{r+1}, s{r+1}, 0xffff")
        E(f"s_mov_b32 s{r+2}, {size}\ns_mov_b32 s{r+3}, 0x20000")
    def row_allreduce(op, v):
        for m in ("quad_perm:[1,0,3,2]", "quad_perm:[2,3,0,1]", "row_half_mirror", "row_mirror"):
            E(f"{op}_dpp {v}, {v}, {v} {m} {DPPF}")
    def xrow_allreduce(op, v, t):
        for sw in ("v_permlane16_swap_b32", "v_permlane32_swap_b32"):
            E(f"v_mov_b32 {t}, {v}\n{sw} {v}, {t}\n{op} {v}, {v}, {t}")
    def masks(base, t):
        E(f"v_and_b32 {t}, 1, v0\nv_lshlrev_b32 {t}, 4, {t}\nv_mov_b32 v{base+3}, 0xffff\nv_lshlrev_b32 {t}, {t}, v{base+3}")
        E(f"v_bfe_u32 v{base+3}, v0, 1, 3")
        for jx in range(4):
            E(f"v_cmp_eq_u32 vcc, {jx}, v{base+3}\nv_cndmask_b32 v{base+jx}, 0, {t}, vcc")
    def masked_mfma(acc, pp, bc, breg, abuf, mbase, first=False):
        for jx in range(4):
            E(f"v_and_b32_dpp v{abuf+jx}, {pp}, v{mbase+jx} row_newbcast:{bc} {DPPF}")
        return f"v_mfma_f32_16x16x32_bf16 v[{acc}:{acc+3}], v[{abuf}:{abuf+3}], v[{breg}:{breg+3}], " + ("0" if first else f"v[{acc}:{acc+3}]")

    if header: E.raw(header.rstrip("\n"))
    E.raw(f"; @launch grid=(256,1,1) block=(512,1,1) lds={LDS_BYTES}")
    E.raw('.amdgcn_target "amdgcn-amd-amdhsa--gfx950"\n.text')
    E.raw(f".globl {KN}\n.p2align 8\n.type {KN},@function\n{KN}:")
    E("s_cmp_ge_u32 s2, 0x100\ns_cbranch_scc1 L_end")
    E("s_load_dwordx16 s[4:19], s[0:1], 0")
    E("s_load_dwordx8 s[20:27], s[0:1], 64")
    stamp(0)
    if diag_spin: E("s_memrealtime s[96:97]")
    E("v_lshrrev_b32 v1, 6, v0\nv_and_b32 v0, 63, v0\nv_readfirstlane_b32 s3, v1")
    E(f"s_and_b32 {sX}, s2, 7\ns_lshr_b32 {sJ}, s2, 3")
    if hmap == 0: E(f"s_and_b32 {sH}, {sJ}, 24\ns_add_u32 {sH}, {sH}, {sX}")
    else: E(f"s_lshr_b32 {sH}, {sJ}, 3\ns_lshl2_add_u32 {sH}, {sX}, {sH}")
    E(f"s_bfe_u32 {sB}, {sJ}, 0x20001\ns_and_b32 {sHALF}, {sJ}, 1")
    E(f"s_lshl_b32 {sP}, {sB}, 5\ns_add_u32 {sP}, {sP}, {sH}")
    E("v_lshrrev_b32 v1, 4, v0")
    E("s_cmp_ge_u32 s3, 4\ns_cbranch_scc1 L_helper")

    RB = 256 - 4*R; SB = RB - 32; BQ = SB - 16; DB = [BQ-8, BQ-4]; OA = BQ - 12; MB = BQ - 16
    assert MB >= 20
    T1, T2, MX, LS, NM = "v8", "v9", "v10", "v11", "v12"
    E(f"s_lshl_b32 {sT}, {sP}, 20\ns_mul_i32 {sT2}, {sHALF}, {HOFF}\ns_add_u32 {sT}, {sT}, {sT2}")
    E(f"s_sub_u32 {sT2}, 0x100000, {sT2}")
    E("s_lshl_b32 s35, s3, 12")
    E("v_and_b32 v2, 3, v0\nv_lshlrev_b32 v2, 4, v2\nv_lshl_add_u32 v2, v1, 6, v2")
    E("v_bfe_u32 v3, v0, 2, 2\nv_lshl_add_u32 v2, v3, 8, v2\nv_add_u32 v2, s35, v2")
    if "noperm" in abl: E("v_lshl_add_u32 v2, v0, 4, s35")
    E("v_lshl_add_u32 v3, v0, 4, s35")
    E("s_waitcnt lgkmcnt(0)")
    srd(36, 6, sT, sT2); srd(40, 8, sT, sT2)
    NL = 256
    cur = [None]
    def issue(n):
        t, i = (n % 128) // 4, n % 4
        if cur[0] != t: E(f"s_mov_b32 s44, {t*GSTR}"); cur[0] = t
        r = RB + 4*(n % R)
        if n < 128: E(f"buffer_load_dwordx4 v[{r}:{r+3}], v2, s[36:39], s44 offen offset:{i*1024} {kv}")
        else:       E(f"buffer_load_dwordx4 v[{r}:{r+3}], v3, s[40:43], s44 offen offset:{i*1024} {kv}")
    st = {"issued": 0, "landed": 0}
    def wait_landed(k):
        if st["landed"] < k:
            E(f"s_waitcnt vmcnt({st['issued']-k})"); st["landed"] = k
    def paced_issue():
        n = st["issued"]
        wait_landed(n - D + 1)
        issue(n); st["issued"] += 1
    for n in range(D): paced_issue()
    masks(MB, T1)
    for i in range(16): E(f"v_mov_b32 v{BQ+i}, 0")
    E(f"v_mov_b32 {MX}, 0xff800000\nv_mov_b32 {LS}, 0")
    E("v_and_b32 v4, 3, v0\nv_lshl_add_u32 v4, v1, 2, v4\nv_lshlrev_b32 v4, 5, v4")
    E("v_and_b32 v5, 15, v0\nv_lshlrev_b32 v5, 5, v5\nv_lshl_add_u32 v5, v1, 4, v5")
    E(f"s_lshl_b32 s46, s3, 9\ns_add_u32 s46, s46, {OP}\nv_add_u32 v5, s46, v5")
    E(f"s_lshl_b32 s46, s3, 3\ns_add_u32 s46, s46, {ML}\nv_mov_b32 v6, s46")
    E(f"s_mov_b32 s47, {SCALE}\ns_mov_b32 s48, {LOG2E}")
    while st["issued"] < R - early: paced_issue()
    stamp(1)
    E("s_barrier")
    stamp(2)
    for u in range(4):
        E(f"ds_read_b128 v[{SB+8*u}:{SB+8*u+3}], v4 offset:{QP+512*u}\nds_read_b128 v[{SB+8*u+4}:{SB+8*u+7}], v4 offset:{QP+512*u+16}")
    while st["issued"] < R: paced_issue()
    E("s_waitcnt lgkmcnt(4)" if not stamps else "s_waitcnt lgkmcnt(0)")
    for e in range(8): E(f"v_add_f32 v{SB+e}, v{SB+e}, v{SB+8+e}")
    E("s_waitcnt lgkmcnt(0)")
    for e in range(8): E(f"v_add_f32 v{SB+16+e}, v{SB+16+e}, v{SB+24+e}")
    for e in range(8): E(f"v_add_f32 v{SB+e}, v{SB+e}, v{SB+16+e}")
    for e in range(4): E(f"v_cvt_pk_bf16_f32 v{SB+8+e}, v{SB+2*e}, v{SB+2*e+1}")
    for i in range(4):
        for e in range(4):
            E(f"v_mov_b32_dpp v{BQ+4*i+e}, v{SB+8+e} quad_perm:[0,1,2,3] row_mask:0xf bank_mask:{1<<i:#x}")
    def qk_post(t):
        d = DB[t & 1]
        return [f"v_mov_b32_dpp {T1}, v{d} quad_perm:[0,0,0,0] {DPPF}",
                f"v_mov_b32_dpp {T2}, v{d+2} quad_perm:[2,2,2,2] {DPPF}",
                None,
                f"v_add_f32_dpp {T1}, v{d+1}, {T1} quad_perm:[1,1,1,1] {DPPF}",
                f"v_add_f32_dpp {T2}, v{d+3}, {T2} quad_perm:[3,3,3,3] {DPPF}",
                f"v_add_f32 {T1}, {T1}, {T2}",
                None,
                f"v_cvt_pk_bf16_f32 {T1}, 0, {T1}",
                f"v_mul_f32 {T1}, s47, {T1}",
                None,
                f"v_cvt_pk_bf16_f32 v{SB+t}, 0, {T1}",
                f"v_max_f32 {MX}, {MX}, v{SB+t}"]
    def expo(t):
        E(f"v_fma_f32 {T1}, v{SB+t}, s48, {NM}\nv_exp_f32 {T1}, {T1}")
        E(f"v_add_f32 {LS}, {LS}, {T1}\nv_cvt_pk_bf16_f32 v{SB+t}, {T1}, {T1}")
    def group(gi):
        wait_landed(4*gi + 4)
        if gi < 32:
            t = gi; d = DB[t & 1]
            mf = []
            for i in range(4):
                r = RB + 4*((4*gi+i) % R)
                mf.append(f"v_mfma_f32_16x16x32_bf16 v[{d}:{d+3}], v[{r}:{r+3}], v[{BQ+4*i}:{BQ+4*i+3}], " + ("0" if i == 0 else f"v[{d}:{d+3}]"))
            E(mf.pop(0))
            if t > 0:
                for x in qk_post(t-1): E(x if x else mf.pop(0))
            for x in mf: E(x)
            if t == 31:
                for x in qk_post(31):
                    if x: E(x)
                E(f"v_max_f32_dpp {MX}, {MX}, {MX} row_ror:4 {DPPF}\nv_max_f32_dpp {MX}, {MX}, {MX} row_ror:8 {DPPF}")
                xrow_allreduce("v_max_f32", MX, T1)
                E(f"v_mul_f32 {MX}, s48, {MX}\nv_sub_f32 {NM}, 0, {MX}")
                expo(0); expo(1)
                stamp(3)
        else:
            t = gi - 32
            pend = None
            for i in range(4):
                r = RB + 4*((4*gi+i) % R)
                m = masked_mfma(OA, f"v{SB+t}", 4*i, r, BQ+4*i, MB, first=(t == 0 and i == 0))
                if pend: E(pend)
                pend = m
            if t < 15: expo(2*t+2)
            E(pend)
            if t < 15: expo(2*t+3)
            if t == 15:
                E(f"v_add_f32_dpp {LS}, {LS}, {LS} row_ror:4 {DPPF}\nv_add_f32_dpp {LS}, {LS}, {LS} row_ror:8 {DPPF}")
                xrow_allreduce("v_add_f32", LS, T1)
                E(f"v_min_u32 {MX}, -2, {MX}\nv_min_u32 {LS}, -2, {LS}")
                E(f"ds_write_b64 v6, v[10:11]")
    done = 0
    while done < 64:
        if st["issued"] < NL and st["issued"] - 4*done <= R - 1 and not (st["issued"] - 4*done >= D + 4 and (st["issued"] % 2 == 0) and st.get("last") == "i"):
            paced_issue(); st["last"] = "i"
            if st["issued"] - 4*done >= D + 4 and st["issued"] % 2 == 0:
                group(done); done += 1; st["last"] = "g"
        else:
            group(done); done += 1; st["last"] = "g"
    E("s_mov_b32 exec_hi, 0")
    E(f"ds_write_b128 v5, v[{OA}:{OA+3}]")
    E("s_waitcnt lgkmcnt(0)")
    stamp(4)
    E("s_barrier")
    stamp_flush([0,1,2,3,4])
    E("s_endpgm")

    E.label("L_helper")
    WB = 128; MB = 12; AB = [16, 20]; AC = 24
    E("s_sub_u32 s35, s3, 4")
    E(f"s_and_b32 {sROT}, {sJ}, 7\ns_lshl_b32 {sROT}, {sROT}, 2")
    E(f"s_lshl_b32 {sP}, {sP}, 1\ns_add_u32 {sP}, {sP}, {sHALF}\ns_lshl_b32 {sP}, {sP}, 12")
    E("v_and_b32 v2, 15, v0")
    E(f"v_lshl_add_u32 v3, v2, 1, {sROT}\nv_and_b32 v3, 31, v3\nv_lshl_add_u32 v3, v1, 5, v3")
    E("s_lshl_b32 s45, s35, 8\nv_lshl_add_u32 v4, v3, 1, s45")
    E("v_lshlrev_b32 v5, 4, v0")
    E("s_lshl_b32 s46, s35, 20\nv_lshlrev_b32 v6, 18, v1\nv_lshl_add_u32 v6, v2, 4, v6\nv_add_u32 v6, s46, v6")
    E(f"s_lshl_b32 s47, {sB}, 10\ns_lshl_b32 {sT}, {sH}, 8\ns_sub_u32 {sT2}, 0x400000, {sT}\ns_lshl_b32 s44, {sROT}, 13")
    E("s_waitcnt lgkmcnt(0)")
    srd(36, 4, None, 4096); srd(40, 10, sT, sT2)
    E("buffer_load_dwordx4 v[28:31], v5, s[36:39], s47 offen")
    E("buffer_load_dword v7, v4, s[36:39], s47 offen")
    if "wq" in abl: E("s_mov_b32 s42, 0")
    def wq_issue(i):
        E(f"buffer_load_dwordx4 v[{WB+4*i}:{WB+4*i+3}], v6, s[40:43], s44 offen {wfl}")
        if i < 31: E("s_add_u32 s44, s44, 0x2000\ns_and_b32 s44, s44, 0x3ffff")
    for i in range(DH): wq_issue(i)
    srd(52, 26, None, WS_BYTES)
    for e in range(4): E(f"v_mov_b32 v{16+e}, -1")
    E(f"s_lshl_b32 s45, s35, 10\ns_add_u32 s45, s45, {sP}")
    extra = 0
    if "noclr" not in abl:
        E(f"buffer_store_dwordx4 v[16:19], v5, s[52:55], s45 offen {hs}")
        extra = 1
    if cpf:
        E("s_getpc_b64 s[56:57]")
        E.label("L_pc")
        E(f"s_sub_u32 s56, s56, L_pc-{KN}\ns_subb_u32 s57, s57, 0\ns_and_b32 s57, s57, 0xffff")
        E(f"s_mov_b32 s58, L_end-{KN}\ns_mov_b32 s59, 0x20000")
        E(f"s_lshl_b32 s45, {sJ}, 2\ns_add_u32 s45, s45, s35\ns_lshl_b32 s45, s45, 8\nv_lshlrev_b32 v40, 2, v0")
        E("buffer_load_dword v41, v40, s[56:59], s45 offen")
        extra += 1
    masks(MB, "v8")
    E(f"s_waitcnt vmcnt({DH+extra})")
    stamp(1)
    for e in range(4): E(f"v_lshlrev_b32 v{32+2*e}, 16, v{28+e}\nv_and_b32 v{33+2*e}, 0xffff0000, v{28+e}")
    E("v_add_f32 v8, v32, v33\nv_add_f32 v9, v34, v35\nv_add_f32 v10, v36, v37\nv_add_f32 v11, v38, v39")
    E("v_add_f32 v8, v8, v9\nv_add_f32 v10, v10, v11\nv_add_f32 v8, v8, v10")
    row_allreduce("v_add_f32", "v8"); xrow_allreduce("v_add_f32", "v8", "v9")
    E("v_mul_f32 v8, 0x3b000000, v8")
    for e in range(8): E(f"v_sub_f32 v{32+e}, v{32+e}, v8")
    E("v_mul_f32 v9, v32, v32\nv_mul_f32 v10, v33, v33")
    for e in range(2, 8): E(f"v_fmac_f32 v{9+(e&1)}, v{32+e}, v{32+e}")
    E("v_add_f32 v9, v9, v10")
    row_allreduce("v_add_f32", "v9"); xrow_allreduce("v_add_f32", "v9", "v10")
    def ln_finish(mean, var):
        E(f"v_mul_f32 {var}, 0x3b000000, {var}\nv_cvt_pk_bf16_f32 {mean}, 0, {mean}\nv_cvt_pk_bf16_f32 {var}, 0, {var}")
        E(f"v_add_f32 {var}, {EPS:#x}, {var}\nv_cvt_pk_bf16_f32 {var}, 0, {var}\nv_sqrt_f32 {var}, {var}")
        E(f"v_cvt_pk_bf16_f32 {var}, 0, {var}\nv_rcp_f32 {var}, {var}")
    ln_finish("v8", "v9")
    E("v_lshlrev_b32 v10, 16, v7\nv_and_b32 v11, 0xffff0000, v7")
    for r in ("v10", "v11"):
        E(f"v_sub_f32 {r}, {r}, v8\nv_cvt_pk_bf16_f32 {r}, 0, {r}\nv_mul_f32 {r}, {r}, v9\nv_cvt_pk_bf16_f32 {r}, {r}, {r}")
    stamp(2)
    def project(pp, issue_fn, depth, extra=0):
        pend = None
        for i in range(32):
            m = masked_mfma(AC, pp[i & 1], i >> 1, WB+4*i, AB[i & 1], MB, first=(i == 0))
            if pend: E(pend)
            if issue_fn:
                E(f"s_waitcnt vmcnt({min(32, i+depth) - i - 1 + (extra if i < depth else 0)})")
                if i + depth < 32: issue_fn(i + depth)
            pend = m
        E(pend)
    project(("v10", "v11"), wq_issue, DH, extra)
    E("s_waitcnt vmcnt(0)")
    E("v_lshlrev_b32 v8, 5, v2\nv_lshl_add_u32 v8, v1, 4, v8\ns_lshl_b32 s46, s35, 9\nv_add_u32 v8, s46, v8")
    E(f"v_and_b32 v9, 3, v0\nv_lshlrev_b32 v9, 3, v9\nv_add_u32 v9, {ML}, v9\nv_mov_b32 v10, -1\nv_mov_b32 v11, -1")
    E("s_mov_b32 exec_hi, 0")
    E(f"ds_write_b128 v8, v[{AC}:{AC+3}] offset:{QP}")
    E("ds_write_b64 v9, v[10:11]")
    E("s_mov_b32 exec_hi, -1")
    E("s_waitcnt lgkmcnt(0)")
    stamp(3)
    E("s_barrier")
    srd(48, 24, None, 256)
    E(f"s_mov_b32 {sSPIN}, 0x40000")
    E("s_cmp_lg_u32 s35, 0\ns_cbranch_scc1 L_wo")
    E(f"s_cmp_ge_u32 {sJ}, {0 if 'f1' in abl else 28}\ns_cbranch_scc1 L_arrive")
    E(f"s_mul_i32 s45, {sX}, 224\ns_lshl_b32 s46, {sJ}, 3\ns_add_u32 s45, s45, s46")
    E("v_lshlrev_b32 v4, 6, v0")
    for t in range(4): E(f"buffer_load_dwordx4 v[{32+4*t}:{35+4*t}], v4, s[36:39], 0 offen offset:{16*t}")
    E(f"s_lshl_b32 {sT}, s45, 1\ns_sub_u32 {sT2}, {512*3584}, {sT}")
    srd(40, 16, sT, sT2); srd(56, 18, sT, sT2)
    E("v_mul_u32_u24 v6, 0xe00, v0")
    def f1_issue(n):
        i = n >> 1
        if n & 1 == 0: E(f"s_mov_b32 s44, {i*64*3584}")
        E(f"buffer_load_dwordx4 v[{WB+4*n}:{WB+4*n+3}], v6, {'s[56:59]' if n & 1 else 's[40:43]'}, s44 offen {ffl}")
    for n in range(DF): f1_issue(n)
    E(f"s_waitcnt vmcnt({DF})")
    for e in range(16): E(f"v_lshlrev_b32 v{48+2*e}, 16, v{32+e}\nv_and_b32 v{49+2*e}, 0xffff0000, v{32+e}")
    E("v_add_f32 v28, v48, v49\nv_add_f32 v29, v50, v51")
    for e in range(4, 32): E(f"v_add_f32 v{28+(e&1)}, v{28+(e&1)}, v{48+e}")
    E("v_add_f32 v28, v28, v29")
    row_allreduce("v_add_f32", "v28")
    E("v_mul_f32 v28, 0x3b000000, v28\nv_mov_b32 v29, 0\nv_mov_b32 v30, 0")
    for e in range(32): E(f"v_sub_f32 v31, v{48+e}, v28\nv_fmac_f32 v{29+(e&1)}, v31, v31")
    E("v_add_f32 v29, v29, v30")
    row_allreduce("v_add_f32", "v29")
    ln_finish("v28", "v29")
    for e in range(32): E(f"v_sub_f32 v{48+e}, v{48+e}, v28\nv_cvt_pk_bf16_f32 v{48+e}, 0, v{48+e}\nv_mul_f32 v{48+e}, v{48+e}, v29")
    for e in range(16): E(f"v_cvt_pk_bf16_f32 v{32+e}, v{48+2*e}, v{49+2*e}")
    for t in range(4): E(f"ds_write_b128 v4, v[{32+4*t}:{35+4*t}] offset:{XN+16*t}")
    E("v_lshlrev_b32 v7, 5, v0")
    for n in range(16):
        E(f"s_waitcnt vmcnt({min(16, n+DF) - n - 1})")
        if n + DF < 16: f1_issue(n + DF)
        E(f"ds_write_b128 v7, v[{WB+4*n}:{WB+4*n+3}] offset:{WT+2048*(n>>1)+16*(n&1)}")
    E("v_lshlrev_b32 v6, 8, v1\nv_lshl_add_u32 v6, v2, 3, v6")
    E("v_and_b32 v7, 3, v0\nv_lshlrev_b32 v7, 10, v7\nv_lshl_add_u32 v7, v1, 4, v7")
    E("s_waitcnt lgkmcnt(0)")
    for s0 in range(0, 16, 4):
        for s in range(s0, s0+4):
            r = 32 + 8*(s & 3)
            E(f"ds_read_b64_tr_b16 v[{r}:{r+1}], v6 offset:{WT+1024*s}\nds_read_b64_tr_b16 v[{r+2}:{r+3}], v6 offset:{WT+1024*s+128}")
            E(f"ds_read_b128 v[{r+4}:{r+7}], v7 offset:{XN+64*s}")
        E("s_waitcnt lgkmcnt(0)")
        for s in range(s0, s0+4):
            r = 32 + 8*(s & 3)
            E(f"v_mfma_f32_16x16x32_bf16 v[{AC}:{AC+3}], v[{r+4}:{r+7}], v[{r}:{r+3}], " + ("0" if s == 0 else f"v[{AC}:{AC+3}]"))
        E("s_nop 3")
    for r in range(4): E(f"v_cvt_pk_bf16_f32 v{32+r}, 0, v{AC+r}")
    for r in range(4): E(f"v_max_f32 v{28+r}, 0, v{32+r}")
    for r in range(4): E(f"v_mul_f32_dpp v{28+r}, v{32+r}, v{28+r} row_ror:8 {DPPF}")
    for r in range(4): E(f"v_cvt_pk_bf16_f32 v{28+r}, 0, v{28+r}")
    E(f"s_lshl_b32 s45, s45, 4\ns_add_u32 s45, s45, {HB}")
    E("s_mov_b64 exec, 0xff")
    E(f"buffer_store_dwordx4 v[28:31], v5, s[52:55], s45 offen {hs}")
    E.fence()
    E.label("L_arrive")
    E("s_mov_b64 exec, 1\nv_mov_b32 v6, 1\ns_waitcnt vmcnt(0)")
    if "satom" in abl:
        E("s_mov_b32 s45, 1\ns_atomic_add s45, s[24:25], 0 glc\ns_waitcnt lgkmcnt(0)\ns_mov_b64 exec, -1")
    elif "noatom" in abl:
        E("s_mov_b32 s45, s2\ns_mov_b64 exec, -1")
    else:
        E("buffer_atomic_add v6, off, s[48:51], 0 sc0 sc1")
        E("s_waitcnt vmcnt(0)\nv_readfirstlane_b32 s45, v6\ns_mov_b64 exec, -1")
    stamp(4)
    E("s_and_b32 s45, s45, 0xff\ns_cmp_lg_u32 s45, 0xff\ns_cbranch_scc1 L_wo")
    E("v_lshlrev_b32 v6, 12, v0\nv_mov_b32 v7, 1")
    for i in range(4):
        E(f"s_mov_b32 s45, {i*64*REC}\nbuffer_store_dword v7, v6, s[52:55], s45 offen offset:3200 {hs}")
    E.fence()
    def wait_counter(lbl):
        E.fence()
        E.label(lbl)
        E(f"buffer_load_dword v6, off, s[52:55], {sP} offset:3200 {hs}\ns_waitcnt vmcnt(0)")
        E("v_readfirstlane_b32 s45, v6")
        E(f"s_cmp_eq_u32 s45, 1\ns_cbranch_scc1 {lbl}_ok")
        E(f"s_sleep 16\ns_sub_u32 {sSPIN}, {sSPIN}, 1\ns_cmp_gt_i32 {sSPIN}, 0\ns_cbranch_scc1 {lbl}")
        E.label(lbl + "_ok")
    E.label("L_wo")
    E(f"s_lshl_b32 {sT}, {sH}, 17")
    srd(40, 12, sT, 0 if "wo" in abl else 0x20000)
    E(f"s_lshl_b32 s45, s35, 8\nv_lshlrev_b32 v6, 15, v1\nv_lshl_add_u32 v6, v2, 4, v6\nv_add_u32 v6, s45, v6\ns_lshl_b32 s44, {sROT}, 10")
    for i in range(0 if "nowo" in abl else 32):
        if i >= DO: E(f"s_waitcnt vmcnt({DO-1})")
        E(f"buffer_load_dwordx4 v[{WB+4*i}:{WB+4*i+3}], v6, s[40:43], s44 offen {wfl}")
        if i < 31: E("s_add_u32 s44, s44, 0x400\ns_and_b32 s44, s44, 0x7fff")
    E("s_waitcnt vmcnt(0)")
    stamp(5)
    E("s_cmp_eq_u32 s35, 2\ns_cbranch_scc1 L_ml")
    E("s_cmp_lg_u32 s35, 1\ns_cbranch_scc1 L_tail")
    if "f2" in abl:
        E("v_mov_b32 v33, 0\nv_mov_b32 v35, 0\ns_mov_b32 s72, 0")
        for t in range(8): E(f"s_mov_b32 s{64+t}, {sP}")
        E("s_branch L_tail")
    E(f"s_mul_i32 {sT}, {sJ}, {56*1024}\ns_lshl_b32 s45, {sX}, 7\ns_add_u32 {sT}, {sT}, s45\ns_sub_u32 {sT2}, {1792*1024}, {sT}")
    srd(40, 20, sT, sT2)
    E("v_and_b32 v7, 7, v0\nv_lshrrev_b32 v36, 3, v0\nv_lshlrev_b32 v4, 10, v36\nv_lshl_add_u32 v4, v7, 4, v4")
    for i in range(7):
        E(f"s_mov_b32 s44, {i*8192}\nbuffer_load_dwordx4 v[{40+4*i}:{43+4*i}], v4, s[40:43], s44 offen {kv}")
    E(f"s_and_b32 s46, {sJ}, 7\ns_lshl_b32 s46, s46, 4\ns_add_u32 s46, s46, s45")
    E(f"s_lshr_b32 s47, {sJ}, 3")
    E("s_lshl_b32 s72, s47, 10\ns_add_u32 s72, s72, s46")
    E("v_lshlrev_b32 v33, 1, v7\nbuffer_load_ushort v34, v33, s[36:39], s72 offen")
    E("v_lshlrev_b32 v35, 12, v36\nv_lshl_add_u32 v35, v7, 2, v35\ns_lshl_b32 s73, s46, 1\nv_add_u32 v35, s73, v35")
    E("s_lshl_b32 s64, s47, 18")
    for t in range(1, 8): E(f"s_add_u32 s{64+t}, s{63+t}, 0x8000")
    wait_counter("L_cnt1")
    E(f"s_mul_i32 s45, {sJ}, {56*16}\ns_add_u32 s45, s45, {HB}\nv_lshlrev_b32 v4, 4, v36")
    for i in range(7):
        E(f"buffer_load_dwordx4 v[{68+4*i}:{71+4*i}], v4, s[52:55], s45 offen offset:{128*i} {hs}")
    for e in range(32): E(f"v_mov_b32 v{96+e}, 0")
    E("v_lshlrev_b32 v34, 16, v34")
    E("s_waitcnt vmcnt(0)")
    for i in range(7):
        for e in range(4):
            E(f"v_lshlrev_b32 v28, 16, v{40+4*i+e}\nv_and_b32 v29, 0xffff0000, v{40+4*i+e}")
            for bb in range(4):
                E(f"v_fmac_f32 v{96+8*bb+2*e}, v{68+4*i+bb}, v28\nv_fmac_f32 v{97+8*bb+2*e}, v{68+4*i+bb}, v29")
    for e in range(16): E(f"v_permlane32_swap_b32 v{96+e}, v{112+e}")
    for e in range(16): E(f"v_add_f32 v{96+e}, v{96+e}, v{112+e}")
    for e in range(8): E(f"v_permlane16_swap_b32 v{96+e}, v{104+e}")
    for e in range(8): E(f"v_add_f32 v{96+e}, v{96+e}, v{104+e}")
    for e in range(4): E(f"v_add_f32_dpp v{28+e}, v{96+e}, v{96+e} row_ror:8 row_mask:0xf bank_mask:0x3")
    for e in range(4): E(f"v_add_f32_dpp v{28+e}, v{100+e}, v{100+e} row_ror:8 row_mask:0xf bank_mask:0xc")
    for e in range(4): E(f"v_min_u32 v{28+e}, -2, v{28+e}")
    E("v_lshlrev_b32 v4, 8, v1\nv_lshl_add_u32 v4, v7, 5, v4\nv_and_b32 v6, 1, v36\nv_lshl_add_u32 v4, v6, 4, v4")
    E(f"buffer_store_dwordx4 v[28:31], v4, s[52:55], {sP} offen offset:2048 {hs}")
    E("v_lshrrev_b32 v4, 1, v36\nv_lshlrev_b32 v4, 18, v4\nv_lshl_add_u32 v4, v6, 12, v4\nv_lshl_add_u32 v4, v7, 2, v4")
    E(f"s_and_b32 s45, {sJ}, 7\ns_lshl_b32 s45, s45, 5\ns_lshl_b32 s46, s47, 8\ns_add_u32 s45, s45, s46\nv_add_u32 v4, s45, v4")
    if hmap == 0: E(f"s_lshl_b32 s44, {sX}, 13\ns_add_u32 s45, s44, 0x10000\ns_add_u32 s46, s45, 0x10000\ns_add_u32 s73, s46, 0x10000")
    else: E(f"s_lshl_b32 s44, {sX}, 15\ns_add_u32 s45, s44, 0x2000\ns_add_u32 s46, s45, 0x2000\ns_add_u32 s73, s46, 0x2000")
    E.fence()
    E.label("L_pd")
    for t, so in enumerate(("s44", "s45", "s46", "s73")):
        E(f"buffer_load_dword v{40+t}, v4, s[52:55], {so} offen offset:2048 {hs}")
    E("s_waitcnt vmcnt(0)")
    E("v_max3_u32 v28, v40, v41, v42\nv_max_u32 v28, v28, v43\nv_cmp_eq_u32 vcc, -1, v28\ns_nop 4")
    E("s_cbranch_vccz L_pd_ok")
    E(f"s_sleep 16\ns_sub_u32 {sSPIN}, {sSPIN}, 1\ns_cmp_gt_i32 {sSPIN}, 0\ns_cbranch_scc1 L_pd")
    E.label("L_pd_ok")
    E("v_add_f32 v40, v40, v41\nv_add_f32 v42, v42, v43\nv_add_f32 v40, v40, v42")
    E(f"v_add_f32_dpp v40, v40, v40 row_ror:8 {DPPF}")
    xrow_allreduce("v_add_f32", "v40", "v41")
    E(f"v_cvt_pk_bf16_f32 v40, 0, v40\nv_mul_f32 v41, 0xbfb8aa3b, v40\nv_exp_f32 v41, v41\nv_add_f32 v41, 1.0, v41")
    E("v_rcp_f32 v41, v41\nv_mul_f32 v41, v40, v41\nv_cvt_pk_bf16_f32 v32, 0, v41")
    stamp(4)
    E.fence()
    E("s_branch L_tail")
    E.label("L_ml")
    E("s_sleep 8\nds_read_b64 v[28:29], v9\ns_waitcnt lgkmcnt(0)")
    E("v_max_u32 v30, v28, v29\nv_cmp_eq_u32 vcc, -1, v30\ns_nop 4")
    E("s_cbranch_vccz L_ml_ok")
    E(f"s_sub_u32 {sSPIN}, {sSPIN}, 1\ns_cmp_gt_i32 {sSPIN}, 0\ns_cbranch_scc1 L_ml")
    E.label("L_ml_ok")
    E(f"v_max_f32_dpp v30, v28, v28 quad_perm:[1,0,3,2] {DPPF}\nv_max_f32_dpp v30, v30, v30 quad_perm:[2,3,0,1] {DPPF}")
    E("v_sub_f32 v31, v28, v30\nv_exp_f32 v31, v31\nv_mul_f32 v31, v31, v29")
    E(f"v_add_f32_dpp v31, v31, v31 quad_perm:[1,0,3,2] {DPPF}\nv_add_f32_dpp v31, v31, v31 quad_perm:[2,3,0,1] {DPPF}")
    E("v_min_u32 v30, -2, v30\nv_min_u32 v31, -2, v31")
    wait_counter("L_cnt2")
    E("s_mov_b64 exec, 1")
    E(f"buffer_store_dwordx2 v[30:31], off, s[52:55], {sP} offset:3072 {hs}")
    E(f"s_mov_b64 exec, -1\ns_xor_b32 s45, {sP}, 0x1000")
    E.label("L_pm")
    E(f"buffer_load_dwordx2 v[36:37], off, s[52:55], s45 offset:3072 {hs}\ns_waitcnt vmcnt(0)")
    E("v_max_u32 v38, v36, v37\nv_cmp_eq_u32 vcc, -1, v38\ns_nop 4")
    E("s_cbranch_vccz L_pm_ok")
    E(f"s_sleep 8\ns_sub_u32 {sSPIN}, {sSPIN}, 1\ns_cmp_gt_i32 {sSPIN}, 0\ns_cbranch_scc1 L_pm")
    E.label("L_pm_ok")
    E("v_max_f32 v38, v30, v36\nv_sub_f32 v30, v30, v38\nv_sub_f32 v36, v36, v38\nv_sub_f32 v28, v28, v38")
    E("v_exp_f32 v30, v30\nv_exp_f32 v36, v36\nv_exp_f32 v28, v28")
    E("v_mul_f32 v31, v31, v30\nv_fmac_f32 v31, v37, v36\nv_rcp_f32 v31, v31\nv_mul_f32 v28, v28, v31")
    E(f"v_and_b32 v29, 3, v0\nv_lshlrev_b32 v29, 2, v29\nds_write_b32 v29, v28 offset:{FW}")
    E("s_waitcnt lgkmcnt(0)")
    stamp(6)
    E.fence()
    E.label("L_tail")
    E("v_lshlrev_b32 v3, 2, v3\nv_mov_b32 v4, 0")
    E("s_barrier")
    stamp(7)
    E(f"ds_read_b128 v[28:31], v4 offset:{FW}")
    for w in range(4): E(f"ds_read_b64 v[{40+2*w}:{41+2*w}], v3 offset:{OP+512*w}")
    E("s_waitcnt lgkmcnt(0)")
    E("v_mul_f32 v10, v28, v40\nv_mul_f32 v11, v28, v41")
    for w in range(1, 4): E(f"v_fmac_f32 v10, v{28+w}, v{40+2*w}\nv_fmac_f32 v11, v{28+w}, v{41+2*w}")
    E("v_cvt_pk_bf16_f32 v10, v10, v10\nv_cvt_pk_bf16_f32 v11, v11, v11")
    project(("v10", "v11"), None, 0)
    E("s_mov_b32 exec_hi, 0")
    for r in range(4): E(f"v_min_u32 v{AC+r}, -2, v{AC+r}")
    E(f"buffer_store_dwordx4 v[{AC}:{AC+3}], v8, s[52:55], {sP} offen {hs}")
    E("s_mov_b32 exec_hi, -1")
    stamp(8)
    E("s_cmp_lg_u32 s35, 1\ns_cbranch_scc1 L_done")
    srd(40, 22, None, 4096)
    E.label("L_poll")
    for t in range(8): E(f"buffer_load_dword v{40+t}, v35, s[52:55], s{64+t} offen {hs}")
    E("s_waitcnt vmcnt(0)")
    E("v_max3_u32 v28, v40, v41, v42\nv_max3_u32 v29, v43, v44, v45\nv_max3_u32 v28, v28, v46, v47\nv_max_u32 v28, v28, v29")
    E("v_cmp_eq_u32 vcc, -1, v28")
    E("v_add_f32 v40, v40, v41\nv_add_f32 v42, v42, v43\nv_add_f32 v44, v44, v45\nv_add_f32 v46, v46, v47\nv_add_f32 v40, v40, v42")
    E("s_cbranch_vccz L_poll_ok")
    E(f"s_sub_u32 {sSPIN}, {sSPIN}, 1\ns_cmp_gt_i32 {sSPIN}, 0\ns_cbranch_scc1 L_poll")
    E.label("L_poll_ok")
    E("v_add_f32 v44, v44, v46\nv_add_f32 v40, v40, v44")
    E(f"v_add_f32_dpp v40, v40, v40 row_ror:8 {DPPF}")
    xrow_allreduce("v_add_f32", "v40", "v41")
    E("v_cvt_pk_bf16_f32 v40, 0, v40\nv_mul_f32 v40, v40, v32\nv_cvt_pk_bf16_f32 v40, 0, v40\nv_add_f32 v40, v40, v34\nv_cvt_pk_bf16_f32 v40, v40, v40")
    E("s_mov_b64 exec, 0xff")
    E("buffer_store_short v40, v33, s[40:43], s72 offen")
    stamp(9)
    if diag_spin and diag_first:
        E("s_not_b32 s98, s96\nv_mov_b32 v6, s98\ns_mov_b64 exec, 1")
        if diag_first == "xcc":
            pass
        E("buffer_atomic_umax v6, off, s[48:51], 0 offset:64 sc1\ns_waitcnt vmcnt(0)")
        E.label("L_diag0")
        E(f"s_memrealtime s[98:99]\ns_waitcnt lgkmcnt(0)\ns_sub_u32 s98, s98, s96\ns_cmp_lt_u32 s98, {(diag_spin-20)*100}\ns_cbranch_scc1 L_diag0")
        E("buffer_load_dword v6, off, s[48:51], 0 offset:64 sc1\ns_waitcnt vmcnt(0)\nv_readfirstlane_b32 s96, v6\ns_not_b32 s96, s96")
    if diag_spin:
        E.label("L_diag")
        E(f"s_memrealtime s[98:99]\ns_waitcnt lgkmcnt(0)\ns_sub_u32 s98, s98, s96\ns_cmp_lt_u32 s98, {diag_spin*100}\ns_cbranch_scc1 L_diag")
    E.fence()
    E.label("L_done")
    stamp_flush(list(range(10)))
    E.label("L_end")
    E("s_endpgm")
    E.raw(f""".section .rodata,"a"
.p2align 6
.amdhsa_kernel {KN}
  .amdhsa_next_free_vgpr 256
  .amdhsa_next_free_sgpr 102
  .amdhsa_accum_offset 256
  .amdhsa_group_segment_fixed_size 0
  .amdhsa_kernarg_size 96
  .amdhsa_user_sgpr_count 2
  .amdhsa_user_sgpr_kernarg_segment_ptr 1
  .amdhsa_system_sgpr_workgroup_id_x 1
.end_amdhsa_kernel""")
    return E.text()

if __name__ == "__main__":
    kw = eval("dict(" + (sys.argv[2] if len(sys.argv) > 2 else "") + ")")
    open(sys.argv[1], "w").write(gen(**kw))
```

```python
import sys
from emit import Emit
KN = "recurrent_scan__mha_block_cached__glu_gated_reglu__decode_kernel"
DPPF = "row_mask:0xf bank_mask:0xf"
QP, OP, ML, FW, XN, WT = 0, 2048, 4096, 4160, 8192, 16384
LDS_BYTES = 32768
REC = 4096
HB = 256 * REC
STAMP = 16 << 20
WS_BYTES = 32 << 20
LOG2E = 0x3fb8aa3b
SCALE = 0x3db504f3
EPS = 0x3727c5ac

def gen(D=6, R=40, DH=10, DO=4, kv="nt", wfl="nt", ffl="nt", inter=False, stamps=False, cpf=True, hs="sc1", early=0, header="", diag_spin=0, hmap=1, DF=2, diag_first=False, abl=()):
    E = Emit()
    HOFF = 16384 if inter else 524288
    GSTR = 32768 if inter else 16384
    sX, sJ, sH, sB, sHALF, sP, sROT, sT, sT2, sSPIN = "s28","s29","s30","s31","s32","s33","s34","s60","s61","s62"
    nst = [0]
    def stamp(i):
        if stamps: E(f"s_memrealtime s[{76+2*i}:{77+2*i}]")
    def stamp_flush(n):
        if not stamps: return
        E("s_waitcnt lgkmcnt(0)")
        E("s_getreg_b32 s63, hwreg(HW_REG_XCC_ID)")
        E("s_mov_b32 s56, s26\ns_and_b32 s57, s27, 0xffff")
        E(f"s_mov_b32 s58, {WS_BYTES}\ns_mov_b32 s59, 0x20000")
        E(f"s_lshl_b32 {sT}, s2, 3\ns_add_u32 {sT}, {sT}, s3\ns_lshl_b32 {sT}, {sT}, 6\ns_add_u32 {sT}, {sT}, {STAMP}")
        E("s_mov_b64 exec, 1")
        for i in range(12):
            E(f"v_mov_b32 v{4+i}, " + (f"s{76+2*i}" if i in n else "0"))
        E("v_mov_b32 v16, s63\nv_mov_b32 v17, 0\nv_mov_b32 v18, 0\nv_mov_b32 v19, 0")
        for i in range(4):
            E(f"buffer_store_dwordx4 v[{4+4*i}:{7+4*i}], off, s[56:59], {sT} offset:{16*i}")
    def srd(r, ptr, off=None, size=0):
        if off is None:
            E(f"s_mov_b32 s{r}, s{ptr}\ns_and_b32 s{r+1}, s{ptr+1}, 0xffff")
        else:
            E(f"s_add_u32 s{r}, s{ptr}, {off}\ns_addc_u32 s{r+1}, s{ptr+1}, 0\ns_and_b32 s{r+1}, s{r+1}, 0xffff")
        E(f"s_mov_b32 s{r+2}, {size}\ns_mov_b32 s{r+3}, 0x20000")
    def row_allreduce(op, v):
        for m in ("quad_perm:[1,0,3,2]", "quad_perm:[2,3,0,1]", "row_half_mirror", "row_mirror"):
            E(f"{op}_dpp {v}, {v}, {v} {m} {DPPF}")
    def xrow_allreduce(op, v, t):
        for sw in ("v_permlane16_swap_b32", "v_permlane32_swap_b32"):
            E(f"v_mov_b32 {t}, {v}\n{sw} {v}, {t}\n{op} {v}, {v}, {t}")
    def masks(base, t):
        E(f"v_and_b32 {t}, 1, v0\nv_lshlrev_b32 {t}, 4, {t}\nv_mov_b32 v{base+3}, 0xffff\nv_lshlrev_b32 {t}, {t}, v{base+3}")
        E(f"v_bfe_u32 v{base+3}, v0, 1, 3")
        for jx in range(4):
            E(f"v_cmp_eq_u32 vcc, {jx}, v{base+3}\nv_cndmask_b32 v{base+jx}, 0, {t}, vcc")
    def masked_mfma(acc, pp, bc, breg, abuf, mbase, first=False):
        for jx in range(4):
            E(f"v_and_b32_dpp v{abuf+jx}, {pp}, v{mbase+jx} row_newbcast:{bc} {DPPF}")
        return f"v_mfma_f32_16x16x32_bf16 v[{acc}:{acc+3}], v[{abuf}:{abuf+3}], v[{breg}:{breg+3}], " + ("0" if first else f"v[{acc}:{acc+3}]")

    if header: E.raw(header.rstrip("\n"))
    E.raw(f"; @launch grid=(256,1,1) block=(512,1,1) lds={LDS_BYTES}")
    E.raw('.amdgcn_target "amdgcn-amd-amdhsa--gfx950"\n.text')
    E.raw(f".globl {KN}\n.p2align 8\n.type {KN},@function\n{KN}:")
    E("s_cmp_ge_u32 s2, 0x100\ns_cbranch_scc1 L_end")
    E("s_load_dwordx16 s[4:19], s[0:1], 0")
    E("s_load_dwordx8 s[20:27], s[0:1], 64")
    stamp(0)
    if diag_spin: E("s_memrealtime s[96:97]")
    E("v_lshrrev_b32 v1, 6, v0\nv_and_b32 v0, 63, v0\nv_readfirstlane_b32 s3, v1")
    E(f"s_and_b32 {sX}, s2, 7\ns_lshr_b32 {sJ}, s2, 3")
    if hmap == 0: E(f"s_and_b32 {sH}, {sJ}, 24\ns_add_u32 {sH}, {sH}, {sX}")
    else: E(f"s_lshr_b32 {sH}, {sJ}, 3\ns_lshl2_add_u32 {sH}, {sX}, {sH}")
    E(f"s_bfe_u32 {sB}, {sJ}, 0x20001\ns_and_b32 {sHALF}, {sJ}, 1")
    E(f"s_lshl_b32 {sP}, {sB}, 5\ns_add_u32 {sP}, {sP}, {sH}")
    E("v_lshrrev_b32 v1, 4, v0")
    E("s_cmp_ge_u32 s3, 4\ns_cbranch_scc1 L_helper")

    RB = 256 - 4*R; SB = RB - 32; BQ = SB - 16; DB = [BQ-8, BQ-4]; OA = BQ - 12; MB = BQ - 16
    assert MB >= 20
    T1, T2, MX, LS, NM = "v8", "v9", "v10", "v11", "v12"
    E(f"s_lshl_b32 {sT}, {sP}, 20\ns_mul_i32 {sT2}, {sHALF}, {HOFF}\ns_add_u32 {sT}, {sT}, {sT2}")
    E(f"s_sub_u32 {sT2}, 0x100000, {sT2}")
    E("s_lshl_b32 s35, s3, 12")
    E("v_and_b32 v2, 3, v0\nv_lshlrev_b32 v2, 4, v2\nv_lshl_add_u32 v2, v1, 6, v2")
    E("v_bfe_u32 v3, v0, 2, 2\nv_lshl_add_u32 v2, v3, 8, v2\nv_add_u32 v2, s35, v2")
    if "noperm" in abl: E("v_lshl_add_u32 v2, v0, 4, s35")
    E("v_lshl_add_u32 v3, v0, 4, s35")
    E("s_waitcnt lgkmcnt(0)")
    srd(36, 6, sT, sT2); srd(40, 8, sT, sT2)
    NL = 256
    cur = [None]
    def issue(n):
        t, i = (n % 128) // 4, n % 4
        if cur[0] != t: E(f"s_mov_b32 s44, {t*GSTR}"); cur[0] = t
        r = RB + 4*(n % R)
        if n < 128: E(f"buffer_load_dwordx4 v[{r}:{r+3}], v2, s[36:39], s44 offen offset:{i*1024} {kv}")
        else:       E(f"buffer_load_dwordx4 v[{r}:{r+3}], v3, s[40:43], s44 offen offset:{i*1024} {kv}")
    st = {"issued": 0, "landed": 0}
    def wait_landed(k):
        if st["landed"] < k:
            E(f"s_waitcnt vmcnt({st['issued']-k})"); st["landed"] = k
    def paced_issue():
        n = st["issued"]
        wait_landed(n - D + 1)
        issue(n); st["issued"] += 1
    for n in range(D): paced_issue()
    masks(MB, T1)
    for i in range(16): E(f"v_mov_b32 v{BQ+i}, 0")
    E(f"v_mov_b32 {MX}, 0xff800000\nv_mov_b32 {LS}, 0")
    E("v_and_b32 v4, 3, v0\nv_lshl_add_u32 v4, v1, 2, v4\nv_lshlrev_b32 v4, 5, v4")
    E("v_and_b32 v5, 15, v0\nv_lshlrev_b32 v5, 5, v5\nv_lshl_add_u32 v5, v1, 4, v5")
    E(f"s_lshl_b32 s46, s3, 9\ns_add_u32 s46, s46, {OP}\nv_add_u32 v5, s46, v5")
    E(f"s_lshl_b32 s46, s3, 3\ns_add_u32 s46, s46, {ML}\nv_mov_b32 v6, s46")
    E(f"s_mov_b32 s47, {SCALE}\ns_mov_b32 s48, {LOG2E}")
    while st["issued"] < R - early: paced_issue()
    stamp(1)
    E("s_barrier")
    stamp(2)
    for u in range(4):
        E(f"ds_read_b128 v[{SB+8*u}:{SB+8*u+3}], v4 offset:{QP+512*u}\nds_read_b128 v[{SB+8*u+4}:{SB+8*u+7}], v4 offset:{QP+512*u+16}")
    while st["issued"] < R: paced_issue()
    E("s_waitcnt lgkmcnt(4)" if not stamps else "s_waitcnt lgkmcnt(0)")
    for e in range(8): E(f"v_add_f32 v{SB+e}, v{SB+e}, v{SB+8+e}")
    E("s_waitcnt lgkmcnt(0)")
    for e in range(8): E(f"v_add_f32 v{SB+16+e}, v{SB+16+e}, v{SB+24+e}")
    for e in range(8): E(f"v_add_f32 v{SB+e}, v{SB+e}, v{SB+16+e}")
    for e in range(4): E(f"v_cvt_pk_bf16_f32 v{SB+8+e}, v{SB+2*e}, v{SB+2*e+1}")
    for i in range(4):
        for e in range(4):
            E(f"v_mov_b32_dpp v{BQ+4*i+e}, v{SB+8+e} quad_perm:[0,1,2,3] row_mask:0xf bank_mask:{1<<i:#x}")
    def qk_post(t):
        d = DB[t & 1]
        return [f"v_mov_b32_dpp {T1}, v{d} quad_perm:[0,0,0,0] {DPPF}",
                f"v_mov_b32_dpp {T2}, v{d+2} quad_perm:[2,2,2,2] {DPPF}",
                None,
                f"v_add_f32_dpp {T1}, v{d+1}, {T1} quad_perm:[1,1,1,1] {DPPF}",
                f"v_add_f32_dpp {T2}, v{d+3}, {T2} quad_perm:[3,3,3,3] {DPPF}",
                f"v_add_f32 {T1}, {T1}, {T2}",
                None,
                f"v_cvt_pk_bf16_f32 {T1}, 0, {T1}",
                f"v_mul_f32 {T1}, s47, {T1}",
                None,
                f"v_cvt_pk_bf16_f32 v{SB+t}, 0, {T1}",
                f"v_max_f32 {MX}, {MX}, v{SB+t}"]
    def expo(t):
        E(f"v_fma_f32 {T1}, v{SB+t}, s48, {NM}\nv_exp_f32 {T1}, {T1}")
        E(f"v_add_f32 {LS}, {LS}, {T1}\nv_cvt_pk_bf16_f32 v{SB+t}, {T1}, {T1}")
    def group(gi):
        wait_landed(4*gi + 4)
        if gi < 32:
            t = gi; d = DB[t & 1]
            mf = []
            for i in range(4):
                r = RB + 4*((4*gi+i) % R)
                mf.append(f"v_mfma_f32_16x16x32_bf16 v[{d}:{d+3}], v[{r}:{r+3}], v[{BQ+4*i}:{BQ+4*i+3}], " + ("0" if i == 0 else f"v[{d}:{d+3}]"))
            E(mf.pop(0))
            if t > 0:
                for x in qk_post(t-1): E(x if x else mf.pop(0))
            for x in mf: E(x)
            if t == 31:
                for x in qk_post(31):
                    if x: E(x)
                E(f"v_max_f32_dpp {MX}, {MX}, {MX} row_ror:4 {DPPF}\nv_max_f32_dpp {MX}, {MX}, {MX} row_ror:8 {DPPF}")
                xrow_allreduce("v_max_f32", MX, T1)
                E(f"v_mul_f32 {MX}, s48, {MX}\nv_sub_f32 {NM}, 0, {MX}")
                expo(0); expo(1)
                stamp(3)
        else:
            t = gi - 32
            pend = None
            for i in range(4):
                r = RB + 4*((4*gi+i) % R)
                m = masked_mfma(OA, f"v{SB+t}", 4*i, r, BQ+4*i, MB, first=(t == 0 and i == 0))
                if pend: E(pend)
                pend = m
            if t < 15: expo(2*t+2)
            E(pend)
            if t < 15: expo(2*t+3)
            if t == 15:
                E(f"v_add_f32_dpp {LS}, {LS}, {LS} row_ror:4 {DPPF}\nv_add_f32_dpp {LS}, {LS}, {LS} row_ror:8 {DPPF}")
                xrow_allreduce("v_add_f32", LS, T1)
                E(f"v_min_u32 {MX}, -2, {MX}\nv_min_u32 {LS}, -2, {LS}")
                E(f"ds_write_b64 v6, v[10:11]")
    done = 0
    while done < 64:
        if st["issued"] < NL and st["issued"] - 4*done <= R - 1 and not (st["issued"] - 4*done >= D + 4 and (st["issued"] % 2 == 0) and st.get("last") == "i"):
            paced_issue(); st["last"] = "i"
            if st["issued"] - 4*done >= D + 4 and st["issued"] % 2 == 0:
                group(done); done += 1; st["last"] = "g"
        else:
            group(done); done += 1; st["last"] = "g"
    E("s_mov_b32 exec_hi, 0")
    E(f"ds_write_b128 v5, v[{OA}:{OA+3}]")
    E("s_waitcnt lgkmcnt(0)")
    stamp(4)
    E("s_barrier")
    stamp_flush([0,1,2,3,4])
    E("s_endpgm")

    E.label("L_helper")
    WB = 128; MB = 12; AB = [16, 20]; AC = 24
    E("s_sub_u32 s35, s3, 4")
    E(f"s_and_b32 {sROT}, {sJ}, 7\ns_lshl_b32 {sROT}, {sROT}, 2")
    E(f"s_lshl_b32 {sP}, {sP}, 1\ns_add_u32 {sP}, {sP}, {sHALF}\ns_lshl_b32 {sP}, {sP}, 12")
    E("v_and_b32 v2, 15, v0")
    E(f"v_lshl_add_u32 v3, v2, 1, {sROT}\nv_and_b32 v3, 31, v3\nv_lshl_add_u32 v3, v1, 5, v3")
    E("s_lshl_b32 s45, s35, 8\nv_lshl_add_u32 v4, v3, 1, s45")
    E("v_lshlrev_b32 v5, 4, v0")
    E("s_lshl_b32 s46, s35, 20\nv_lshlrev_b32 v6, 18, v1\nv_lshl_add_u32 v6, v2, 4, v6\nv_add_u32 v6, s46, v6")
    E(f"s_lshl_b32 s47, {sB}, 10\ns_lshl_b32 {sT}, {sH}, 8\ns_sub_u32 {sT2}, 0x400000, {sT}\ns_lshl_b32 s44, {sROT}, 13")
    E("s_waitcnt lgkmcnt(0)")
    srd(36, 4, None, 4096); srd(40, 10, sT, sT2)
    E("buffer_load_dwordx4 v[28:31], v5, s[36:39], s47 offen")
    E("buffer_load_dword v7, v4, s[36:39], s47 offen")
    if "wq" in abl: E("s_mov_b32 s42, 0")
    def wq_issue(i):
        E(f"buffer_load_dwordx4 v[{WB+4*i}:{WB+4*i+3}], v6, s[40:43], s44 offen {wfl}")
        if i < 31: E("s_add_u32 s44, s44, 0x2000\ns_and_b32 s44, s44, 0x3ffff")
    for i in range(DH): wq_issue(i)
    srd(52, 26, None, WS_BYTES)
    for e in range(4): E(f"v_mov_b32 v{16+e}, -1")
    E(f"s_lshl_b32 s45, s35, 10\ns_add_u32 s45, s45, {sP}")
    extra = 0
    if "noclr" not in abl:
        E(f"buffer_store_dwordx4 v[16:19], v5, s[52:55], s45 offen {hs}")
        extra = 1
    if cpf:
        E("s_getpc_b64 s[56:57]")
        E.label("L_pc")
        E(f"s_sub_u32 s56, s56, L_pc-{KN}\ns_subb_u32 s57, s57, 0\ns_and_b32 s57, s57, 0xffff")
        E(f"s_mov_b32 s58, L_end-{KN}\ns_mov_b32 s59, 0x20000")
        E(f"s_lshl_b32 s45, {sJ}, 2\ns_add_u32 s45, s45, s35\ns_lshl_b32 s45, s45, 8\nv_lshlrev_b32 v40, 2, v0")
        E("buffer_load_dword v41, v40, s[56:59], s45 offen")
        extra += 1
    masks(MB, "v8")
    E(f"s_waitcnt vmcnt({DH+extra})")
    stamp(1)
    if diag_first == "x": E("s_memrealtime s[94:95]")
    for e in range(4): E(f"v_lshlrev_b32 v{32+2*e}, 16, v{28+e}\nv_and_b32 v{33+2*e}, 0xffff0000, v{28+e}")
    E("v_add_f32 v8, v32, v33\nv_add_f32 v9, v34, v35\nv_add_f32 v10, v36, v37\nv_add_f32 v11, v38, v39")
    E("v_add_f32 v8, v8, v9\nv_add_f32 v10, v10, v11\nv_add_f32 v8, v8, v10")
    row_allreduce("v_add_f32", "v8"); xrow_allreduce("v_add_f32", "v8", "v9")
    E("v_mul_f32 v8, 0x3b000000, v8")
    for e in range(8): E(f"v_sub_f32 v{32+e}, v{32+e}, v8")
    E("v_mul_f32 v9, v32, v32\nv_mul_f32 v10, v33, v33")
    for e in range(2, 8): E(f"v_fmac_f32 v{9+(e&1)}, v{32+e}, v{32+e}")
    E("v_add_f32 v9, v9, v10")
    row_allreduce("v_add_f32", "v9"); xrow_allreduce("v_add_f32", "v9", "v10")
    def ln_finish(mean, var):
        E(f"v_mul_f32 {var}, 0x3b000000, {var}\nv_cvt_pk_bf16_f32 {mean}, 0, {mean}\nv_cvt_pk_bf16_f32 {var}, 0, {var}")
        E(f"v_add_f32 {var}, {EPS:#x}, {var}\nv_cvt_pk_bf16_f32 {var}, 0, {var}\nv_sqrt_f32 {var}, {var}")
        E(f"v_cvt_pk_bf16_f32 {var}, 0, {var}\nv_rcp_f32 {var}, {var}")
    ln_finish("v8", "v9")
    E("v_lshlrev_b32 v10, 16, v7\nv_and_b32 v11, 0xffff0000, v7")
    for r in ("v10", "v11"):
        E(f"v_sub_f32 {r}, {r}, v8\nv_cvt_pk_bf16_f32 {r}, 0, {r}\nv_mul_f32 {r}, {r}, v9\nv_cvt_pk_bf16_f32 {r}, {r}, {r}")
    stamp(2)
    def project(pp, issue_fn, depth, extra=0):
        pend = None
        for i in range(32):
            m = masked_mfma(AC, pp[i & 1], i >> 1, WB+4*i, AB[i & 1], MB, first=(i == 0))
            if pend: E(pend)
            if issue_fn:
                E(f"s_waitcnt vmcnt({min(32, i+depth) - i - 1 + (extra if i < depth else 0)})")
                if i + depth < 32: issue_fn(i + depth)
            pend = m
        E(pend)
    project(("v10", "v11"), wq_issue, DH, extra)
    E("s_waitcnt vmcnt(0)")
    E("v_lshlrev_b32 v8, 5, v2\nv_lshl_add_u32 v8, v1, 4, v8\ns_lshl_b32 s46, s35, 9\nv_add_u32 v8, s46, v8")
    E(f"v_and_b32 v9, 3, v0\nv_lshlrev_b32 v9, 3, v9\nv_add_u32 v9, {ML}, v9\nv_mov_b32 v10, -1\nv_mov_b32 v11, -1")
    E("s_mov_b32 exec_hi, 0")
    E(f"ds_write_b128 v8, v[{AC}:{AC+3}] offset:{QP}")
    E("ds_write_b64 v9, v[10:11]")
    E("s_mov_b32 exec_hi, -1")
    E("s_waitcnt lgkmcnt(0)")
    stamp(3)
    E("s_barrier")
    srd(48, 24, None, 256)
    E(f"s_mov_b32 {sSPIN}, 0x40000")
    E("s_cmp_lg_u32 s35, 0\ns_cbranch_scc1 L_wo")
    E(f"s_cmp_ge_u32 {sJ}, {0 if 'f1' in abl else 28}\ns_cbranch_scc1 L_arrive")
    E(f"s_mul_i32 s45, {sX}, 224\ns_lshl_b32 s46, {sJ}, 3\ns_add_u32 s45, s45, s46")
    E("v_lshlrev_b32 v4, 6, v0")
    for t in range(4): E(f"buffer_load_dwordx4 v[{32+4*t}:{35+4*t}], v4, s[36:39], 0 offen offset:{16*t}")
    E(f"s_lshl_b32 {sT}, s45, 1\ns_sub_u32 {sT2}, {512*3584}, {sT}")
    srd(40, 16, sT, sT2); srd(56, 18, sT, sT2)
    E("v_mul_u32_u24 v6, 0xe00, v0")
    def f1_issue(n):
        i = n >> 1
        if n & 1 == 0: E(f"s_mov_b32 s44, {i*64*3584}")
        E(f"buffer_load_dwordx4 v[{WB+4*n}:{WB+4*n+3}], v6, {'s[56:59]' if n & 1 else 's[40:43]'}, s44 offen {ffl}")
    for n in range(DF): f1_issue(n)
    E(f"s_waitcnt vmcnt({DF})")
    for e in range(16): E(f"v_lshlrev_b32 v{48+2*e}, 16, v{32+e}\nv_and_b32 v{49+2*e}, 0xffff0000, v{32+e}")
    E("v_add_f32 v28, v48, v49\nv_add_f32 v29, v50, v51")
    for e in range(4, 32): E(f"v_add_f32 v{28+(e&1)}, v{28+(e&1)}, v{48+e}")
    E("v_add_f32 v28, v28, v29")
    row_allreduce("v_add_f32", "v28")
    E("v_mul_f32 v28, 0x3b000000, v28\nv_mov_b32 v29, 0\nv_mov_b32 v30, 0")
    for e in range(32): E(f"v_sub_f32 v31, v{48+e}, v28\nv_fmac_f32 v{29+(e&1)}, v31, v31")
    E("v_add_f32 v29, v29, v30")
    row_allreduce("v_add_f32", "v29")
    ln_finish("v28", "v29")
    for e in range(32): E(f"v_sub_f32 v{48+e}, v{48+e}, v28\nv_cvt_pk_bf16_f32 v{48+e}, 0, v{48+e}\nv_mul_f32 v{48+e}, v{48+e}, v29")
    for e in range(16): E(f"v_cvt_pk_bf16_f32 v{32+e}, v{48+2*e}, v{49+2*e}")
    for t in range(4): E(f"ds_write_b128 v4, v[{32+4*t}:{35+4*t}] offset:{XN+16*t}")
    E("v_lshlrev_b32 v7, 5, v0")
    for n in range(16):
        E(f"s_waitcnt vmcnt({min(16, n+DF) - n - 1})")
        if n + DF < 16: f1_issue(n + DF)
        E(f"ds_write_b128 v7, v[{WB+4*n}:{WB+4*n+3}] offset:{WT+2048*(n>>1)+16*(n&1)}")
    E("v_lshlrev_b32 v6, 8, v1\nv_lshl_add_u32 v6, v2, 3, v6")
    E("v_and_b32 v7, 3, v0\nv_lshlrev_b32 v7, 10, v7\nv_lshl_add_u32 v7, v1, 4, v7")
    E("s_waitcnt lgkmcnt(0)")
    for s0 in range(0, 16, 4):
        for s in range(s0, s0+4):
            r = 32 + 8*(s & 3)
            E(f"ds_read_b64_tr_b16 v[{r}:{r+1}], v6 offset:{WT+1024*s}\nds_read_b64_tr_b16 v[{r+2}:{r+3}], v6 offset:{WT+1024*s+128}")
            E(f"ds_read_b128 v[{r+4}:{r+7}], v7 offset:{XN+64*s}")
        E("s_waitcnt lgkmcnt(0)")
        for s in range(s0, s0+4):
            r = 32 + 8*(s & 3)
            E(f"v_mfma_f32_16x16x32_bf16 v[{AC}:{AC+3}], v[{r+4}:{r+7}], v[{r}:{r+3}], " + ("0" if s == 0 else f"v[{AC}:{AC+3}]"))
        E("s_nop 3")
    for r in range(4): E(f"v_cvt_pk_bf16_f32 v{32+r}, 0, v{AC+r}")
    for r in range(4): E(f"v_max_f32 v{28+r}, 0, v{32+r}")
    for r in range(4): E(f"v_mul_f32_dpp v{28+r}, v{32+r}, v{28+r} row_ror:8 {DPPF}")
    for r in range(4): E(f"v_cvt_pk_bf16_f32 v{28+r}, 0, v{28+r}")
    E(f"s_lshl_b32 s45, s45, 4\ns_add_u32 s45, s45, {HB}")
    E("s_mov_b64 exec, 0xff")
    E(f"buffer_store_dwordx4 v[28:31], v5, s[52:55], s45 offen {hs}")
    E.fence()
    E.label("L_arrive")
    E("s_mov_b64 exec, 1\nv_mov_b32 v6, 1\ns_waitcnt vmcnt(0)")
    if "satom" in abl:
        E("s_mov_b32 s45, 1\ns_atomic_add s45, s[24:25], 0 glc\ns_waitcnt lgkmcnt(0)\ns_mov_b64 exec, -1")
    elif "noatom" in abl:
        E("s_mov_b32 s45, s2\ns_mov_b64 exec, -1")
    else:
        E("buffer_atomic_add v6, off, s[48:51], 0 sc0 sc1")
        E("s_waitcnt vmcnt(0)\nv_readfirstlane_b32 s45, v6\ns_mov_b64 exec, -1")
    stamp(4)
    E("s_and_b32 s45, s45, 0xff\ns_cmp_lg_u32 s45, 0xff\ns_cbranch_scc1 L_wo")
    E("v_lshlrev_b32 v6, 12, v0\nv_mov_b32 v7, 1")
    for i in range(4):
        E(f"s_mov_b32 s45, {i*64*REC}\nbuffer_store_dword v7, v6, s[52:55], s45 offen offset:3200 {hs}")
    E.fence()
    def wait_counter(lbl):
        E.fence()
        E.label(lbl)
        E(f"buffer_load_dword v6, off, s[52:55], {sP} offset:3200 {hs}\ns_waitcnt vmcnt(0)")
        E("v_readfirstlane_b32 s45, v6")
        E(f"s_cmp_eq_u32 s45, 1\ns_cbranch_scc1 {lbl}_ok")
        E(f"s_sleep 16\ns_sub_u32 {sSPIN}, {sSPIN}, 1\ns_cmp_gt_i32 {sSPIN}, 0\ns_cbranch_scc1 {lbl}")
        E.label(lbl + "_ok")
    E.label("L_wo")
    E(f"s_lshl_b32 {sT}, {sH}, 17")
    srd(40, 12, sT, 0 if "wo" in abl else 0x20000)
    E(f"s_lshl_b32 s45, s35, 8\nv_lshlrev_b32 v6, 15, v1\nv_lshl_add_u32 v6, v2, 4, v6\nv_add_u32 v6, s45, v6\ns_lshl_b32 s44, {sROT}, 10")
    for i in range(0 if "nowo" in abl else 32):
        if i >= DO: E(f"s_waitcnt vmcnt({DO-1})")
        E(f"buffer_load_dwordx4 v[{WB+4*i}:{WB+4*i+3}], v6, s[40:43], s44 offen {wfl}")
        if i < 31: E("s_add_u32 s44, s44, 0x400\ns_and_b32 s44, s44, 0x7fff")
    E("s_waitcnt vmcnt(0)")
    stamp(5)
    E("s_cmp_eq_u32 s35, 2\ns_cbranch_scc1 L_ml")
    E("s_cmp_lg_u32 s35, 1\ns_cbranch_scc1 L_tail")
    if "f2" in abl:
        E("v_mov_b32 v33, 0\nv_mov_b32 v35, 0\ns_mov_b32 s72, 0")
        for t in range(8): E(f"s_mov_b32 s{64+t}, {sP}")
        E("s_branch L_tail")
    E(f"s_mul_i32 {sT}, {sJ}, {56*1024}\ns_lshl_b32 s45, {sX}, 7\ns_add_u32 {sT}, {sT}, s45\ns_sub_u32 {sT2}, {1792*1024}, {sT}")
    srd(40, 20, sT, sT2)
    E("v_and_b32 v7, 7, v0\nv_lshrrev_b32 v36, 3, v0\nv_lshlrev_b32 v4, 10, v36\nv_lshl_add_u32 v4, v7, 4, v4")
    for i in range(7):
        E(f"s_mov_b32 s44, {i*8192}\nbuffer_load_dwordx4 v[{40+4*i}:{43+4*i}], v4, s[40:43], s44 offen {kv}")
    E(f"s_and_b32 s46, {sJ}, 7\ns_lshl_b32 s46, s46, 4\ns_add_u32 s46, s46, s45")
    E(f"s_lshr_b32 s47, {sJ}, 3")
    E("s_lshl_b32 s72, s47, 10\ns_add_u32 s72, s72, s46")
    E("v_lshlrev_b32 v33, 1, v7\nbuffer_load_ushort v34, v33, s[36:39], s72 offen")
    E("v_lshlrev_b32 v35, 12, v36\nv_lshl_add_u32 v35, v7, 2, v35\ns_lshl_b32 s73, s46, 1\nv_add_u32 v35, s73, v35")
    E("s_lshl_b32 s64, s47, 18")
    for t in range(1, 8): E(f"s_add_u32 s{64+t}, s{63+t}, 0x8000")
    wait_counter("L_cnt1")
    E(f"s_mul_i32 s45, {sJ}, {56*16}\ns_add_u32 s45, s45, {HB}\nv_lshlrev_b32 v4, 4, v36")
    for i in range(7):
        E(f"buffer_load_dwordx4 v[{68+4*i}:{71+4*i}], v4, s[52:55], s45 offen offset:{128*i} {hs}")
    for e in range(32): E(f"v_mov_b32 v{96+e}, 0")
    E("v_lshlrev_b32 v34, 16, v34")
    E("s_waitcnt vmcnt(0)")
    for i in range(7):
        for e in range(4):
            E(f"v_lshlrev_b32 v28, 16, v{40+4*i+e}\nv_and_b32 v29, 0xffff0000, v{40+4*i+e}")
            for bb in range(4):
                E(f"v_fmac_f32 v{96+8*bb+2*e}, v{68+4*i+bb}, v28\nv_fmac_f32 v{97+8*bb+2*e}, v{68+4*i+bb}, v29")
    for e in range(16): E(f"v_permlane32_swap_b32 v{96+e}, v{112+e}")
    for e in range(16): E(f"v_add_f32 v{96+e}, v{96+e}, v{112+e}")
    for e in range(8): E(f"v_permlane16_swap_b32 v{96+e}, v{104+e}")
    for e in range(8): E(f"v_add_f32 v{96+e}, v{96+e}, v{104+e}")
    for e in range(4): E(f"v_add_f32_dpp v{28+e}, v{96+e}, v{96+e} row_ror:8 row_mask:0xf bank_mask:0x3")
    for e in range(4): E(f"v_add_f32_dpp v{28+e}, v{100+e}, v{100+e} row_ror:8 row_mask:0xf bank_mask:0xc")
    for e in range(4): E(f"v_min_u32 v{28+e}, -2, v{28+e}")
    E("v_lshlrev_b32 v4, 8, v1\nv_lshl_add_u32 v4, v7, 5, v4\nv_and_b32 v6, 1, v36\nv_lshl_add_u32 v4, v6, 4, v4")
    E(f"buffer_store_dwordx4 v[28:31], v4, s[52:55], {sP} offen offset:2048 {hs}")
    E("v_lshrrev_b32 v4, 1, v36\nv_lshlrev_b32 v4, 18, v4\nv_lshl_add_u32 v4, v6, 12, v4\nv_lshl_add_u32 v4, v7, 2, v4")
    E(f"s_and_b32 s45, {sJ}, 7\ns_lshl_b32 s45, s45, 5\ns_lshl_b32 s46, s47, 8\ns_add_u32 s45, s45, s46\nv_add_u32 v4, s45, v4")
    if hmap == 0: E(f"s_lshl_b32 s44, {sX}, 13\ns_add_u32 s45, s44, 0x10000\ns_add_u32 s46, s45, 0x10000\ns_add_u32 s73, s46, 0x10000")
    else: E(f"s_lshl_b32 s44, {sX}, 15\ns_add_u32 s45, s44, 0x2000\ns_add_u32 s46, s45, 0x2000\ns_add_u32 s73, s46, 0x2000")
    E.fence()
    E.label("L_pd")
    for t, so in enumerate(("s44", "s45", "s46", "s73")):
        E(f"buffer_load_dword v{40+t}, v4, s[52:55], {so} offen offset:2048 {hs}")
    E("s_waitcnt vmcnt(0)")
    E("v_max3_u32 v28, v40, v41, v42\nv_max_u32 v28, v28, v43\nv_cmp_eq_u32 vcc, -1, v28\ns_nop 4")
    E("s_cbranch_vccz L_pd_ok")
    E(f"s_sleep 16\ns_sub_u32 {sSPIN}, {sSPIN}, 1\ns_cmp_gt_i32 {sSPIN}, 0\ns_cbranch_scc1 L_pd")
    E.label("L_pd_ok")
    E("v_add_f32 v40, v40, v41\nv_add_f32 v42, v42, v43\nv_add_f32 v40, v40, v42")
    E(f"v_add_f32_dpp v40, v40, v40 row_ror:8 {DPPF}")
    xrow_allreduce("v_add_f32", "v40", "v41")
    E(f"v_cvt_pk_bf16_f32 v40, 0, v40\nv_mul_f32 v41, 0xbfb8aa3b, v40\nv_exp_f32 v41, v41\nv_add_f32 v41, 1.0, v41")
    E("v_rcp_f32 v41, v41\nv_mul_f32 v41, v40, v41\nv_cvt_pk_bf16_f32 v32, 0, v41")
    stamp(4)
    E.fence()
    E("s_branch L_tail")
    E.label("L_ml")
    E("s_sleep 8\nds_read_b64 v[28:29], v9\ns_waitcnt lgkmcnt(0)")
    E("v_max_u32 v30, v28, v29\nv_cmp_eq_u32 vcc, -1, v30\ns_nop 4")
    E("s_cbranch_vccz L_ml_ok")
    E(f"s_sub_u32 {sSPIN}, {sSPIN}, 1\ns_cmp_gt_i32 {sSPIN}, 0\ns_cbranch_scc1 L_ml")
    E.label("L_ml_ok")
    E(f"v_max_f32_dpp v30, v28, v28 quad_perm:[1,0,3,2] {DPPF}\nv_max_f32_dpp v30, v30, v30 quad_perm:[2,3,0,1] {DPPF}")
    E("v_sub_f32 v31, v28, v30\nv_exp_f32 v31, v31\nv_mul_f32 v31, v31, v29")
    E(f"v_add_f32_dpp v31, v31, v31 quad_perm:[1,0,3,2] {DPPF}\nv_add_f32_dpp v31, v31, v31 quad_perm:[2,3,0,1] {DPPF}")
    E("v_min_u32 v30, -2, v30\nv_min_u32 v31, -2, v31")
    wait_counter("L_cnt2")
    E("s_mov_b64 exec, 1")
    E(f"buffer_store_dwordx2 v[30:31], off, s[52:55], {sP} offset:3072 {hs}")
    E(f"s_mov_b64 exec, -1\ns_xor_b32 s45, {sP}, 0x1000")
    E.label("L_pm")
    E(f"buffer_load_dwordx2 v[36:37], off, s[52:55], s45 offset:3072 {hs}\ns_waitcnt vmcnt(0)")
    E("v_max_u32 v38, v36, v37\nv_cmp_eq_u32 vcc, -1, v38\ns_nop 4")
    E("s_cbranch_vccz L_pm_ok")
    E(f"s_sleep 8\ns_sub_u32 {sSPIN}, {sSPIN}, 1\ns_cmp_gt_i32 {sSPIN}, 0\ns_cbranch_scc1 L_pm")
    E.label("L_pm_ok")
    E("v_max_f32 v38, v30, v36\nv_sub_f32 v30, v30, v38\nv_sub_f32 v36, v36, v38\nv_sub_f32 v28, v28, v38")
    E("v_exp_f32 v30, v30\nv_exp_f32 v36, v36\nv_exp_f32 v28, v28")
    E("v_mul_f32 v31, v31, v30\nv_fmac_f32 v31, v37, v36\nv_rcp_f32 v31, v31\nv_mul_f32 v28, v28, v31")
    E(f"v_and_b32 v29, 3, v0\nv_lshlrev_b32 v29, 2, v29\nds_write_b32 v29, v28 offset:{FW}")
    E("s_waitcnt lgkmcnt(0)")
    stamp(6)
    E.fence()
    E.label("L_tail")
    E("v_lshlrev_b32 v3, 2, v3\nv_mov_b32 v4, 0")
    E("s_barrier")
    stamp(7)
    E(f"ds_read_b128 v[28:31], v4 offset:{FW}")
    for w in range(4): E(f"ds_read_b64 v[{40+2*w}:{41+2*w}], v3 offset:{OP+512*w}")
    E("s_waitcnt lgkmcnt(0)")
    E("v_mul_f32 v10, v28, v40\nv_mul_f32 v11, v28, v41")
    for w in range(1, 4): E(f"v_fmac_f32 v10, v{28+w}, v{40+2*w}\nv_fmac_f32 v11, v{28+w}, v{41+2*w}")
    E("v_cvt_pk_bf16_f32 v10, v10, v10\nv_cvt_pk_bf16_f32 v11, v11, v11")
    project(("v10", "v11"), None, 0)
    E("s_mov_b32 exec_hi, 0")
    for r in range(4): E(f"v_min_u32 v{AC+r}, -2, v{AC+r}")
    E(f"buffer_store_dwordx4 v[{AC}:{AC+3}], v8, s[52:55], {sP} offen {hs}")
    E("s_mov_b32 exec_hi, -1")
    stamp(8)
    E("s_cmp_lg_u32 s35, 1\ns_cbranch_scc1 L_done")
    srd(40, 22, None, 4096)
    E.label("L_poll")
    for t in range(8): E(f"buffer_load_dword v{40+t}, v35, s[52:55], s{64+t} offen {hs}")
    E("s_waitcnt vmcnt(0)")
    E("v_max3_u32 v28, v40, v41, v42\nv_max3_u32 v29, v43, v44, v45\nv_max3_u32 v28, v28, v46, v47\nv_max_u32 v28, v28, v29")
    E("v_cmp_eq_u32 vcc, -1, v28")
    E("v_add_f32 v40, v40, v41\nv_add_f32 v42, v42, v43\nv_add_f32 v44, v44, v45\nv_add_f32 v46, v46, v47\nv_add_f32 v40, v40, v42")
    E("s_cbranch_vccz L_poll_ok")
    E(f"s_sub_u32 {sSPIN}, {sSPIN}, 1\ns_cmp_gt_i32 {sSPIN}, 0\ns_cbranch_scc1 L_poll")
    E.label("L_poll_ok")
    E("v_add_f32 v44, v44, v46\nv_add_f32 v40, v40, v44")
    E(f"v_add_f32_dpp v40, v40, v40 row_ror:8 {DPPF}")
    xrow_allreduce("v_add_f32", "v40", "v41")
    E("v_cvt_pk_bf16_f32 v40, 0, v40\nv_mul_f32 v40, v40, v32\nv_cvt_pk_bf16_f32 v40, 0, v40\nv_add_f32 v40, v40, v34\nv_cvt_pk_bf16_f32 v40, v40, v40")
    E("s_mov_b64 exec, 0xff")
    E("buffer_store_short v40, v33, s[40:43], s72 offen")
    stamp(9)
    if diag_spin and diag_first:
        E("s_not_b32 s98, s96\nv_mov_b32 v6, s98\ns_mov_b64 exec, 1")
        if diag_first == "xcc":
            pass
        E("buffer_atomic_umax v6, off, s[48:51], 0 offset:64 sc1\ns_waitcnt vmcnt(0)")
        E.label("L_diag0")
        E(f"s_memrealtime s[98:99]\ns_waitcnt lgkmcnt(0)\ns_sub_u32 s98, s98, s96\ns_cmp_lt_u32 s98, {(diag_spin-20)*100}\ns_cbranch_scc1 L_diag0")
        if diag_first == "skew":
            E("buffer_load_dword v6, off, s[48:51], 0 offset:64 sc1\ns_waitcnt vmcnt(0)\nv_readfirstlane_b32 s97, v6\ns_not_b32 s97, s97")
            E("s_sub_u32 s97, s96, s97\ns_min_u32 s97, s97, 700\ns_mul_i32 s97, s97, 10\ns_add_u32 s96, s96, s97")
        elif diag_first in ("x", "q"):
            E("s_sub_u32 s97, s94, s96\ns_min_u32 s97, s97, 700\ns_mul_i32 s97, s97, 10\ns_add_u32 s96, s96, s97")
        else:
            E("buffer_load_dword v6, off, s[48:51], 0 offset:64 sc1\ns_waitcnt vmcnt(0)\nv_readfirstlane_b32 s96, v6\ns_not_b32 s96, s96")
    if diag_spin:
        E.label("L_diag")
        E(f"s_memrealtime s[98:99]\ns_waitcnt lgkmcnt(0)\ns_sub_u32 s98, s98, s96\ns_cmp_lt_u32 s98, {diag_spin*100}\ns_cbranch_scc1 L_diag")
    E.fence()
    E.label("L_done")
    stamp_flush(list(range(10)))
    E.label("L_end")
    E("s_endpgm")
    E.raw(f""".section .rodata,"a"
.p2align 6
.amdhsa_kernel {KN}
  .amdhsa_next_free_vgpr 256
  .amdhsa_next_free_sgpr 102
  .amdhsa_accum_offset 256
  .amdhsa_group_segment_fixed_size 0
  .amdhsa_kernarg_size 96
  .amdhsa_user_sgpr_count 2
  .amdhsa_user_sgpr_kernarg_segment_ptr 1
  .amdhsa_system_sgpr_workgroup_id_x 1
.end_amdhsa_kernel""")
    return E.text()

if __name__ == "__main__":
    kw = eval("dict(" + (sys.argv[2] if len(sys.argv) > 2 else "") + ")")
    open(sys.argv[1], "w").write(gen(**kw))
STAMPS = [("S start", slice(0,4), 0), ("ringfull", slice(0,4), 1), ("B1", slice(0,4), 2), ("Kdone", slice(0,4), 3), ("Vdone", slice(0,4), 4),
          ("H x", slice(4,8), 1), ("H q", slice(4,8), 3), ("H0arr", slice(4,5), 4), ("H1g", slice(5,6), 4), ("wo", slice(4,8), 5), ("fw", slice(6,7), 6),
          ("B2", slice(4,8), 7), ("ystore", slice(4,8), 8), ("out", slice(5,6), 9)]
```

```python
import sys
from emit import Emit
KN = "recurrent_scan__mha_block_cached__glu_gated_reglu__decode_kernel"
DPPF = "row_mask:0xf bank_mask:0xf"
QP, OP, ML, FW, XN, WT = 0, 2048, 4096, 4160, 8192, 16384
LDS_BYTES = 32768
REC = 4096
HB = 256 * REC
EP = HB + 32768
STAMP = 16 << 20
WS_BYTES = 32 << 20
LOG2E = 0x3fb8aa3b
SCALE = 0x3db504f3
EPS = 0x3727c5ac
TAGMUL = 37

STAMPS = [("S start", slice(0,4), 0), ("S first", slice(0,4), 5), ("ringfull", slice(0,4), 1), ("B1", slice(0,4), 2), ("Kdone", slice(0,4), 3), ("Vdone", slice(0,4), 4),
          ("H x", slice(4,8), 1), ("H q", slice(4,8), 3), ("H0 h", slice(4,5), 4), ("H1 g", slice(5,6), 4), ("wo", slice(4,8), 5), ("fw", slice(6,7), 6),
          ("B2", slice(4,8), 7), ("ystore", slice(4,8), 8), ("out", slice(5,6), 9)]

def gen(dsched=((0,5),(224,8)), R=40, DH=3, wo0=((0,3),), wo1=((0,1),(17,3)), wo23=((0,1),(16,2)), f2at=17, DF=1,
        kv="nt", wfl="", ffl="", dfl="nt", hbit=14, stamps=False, cpf=True, hs="sc1", early=0, header="", abl=()):
    E = Emit()
    sX, sJ, sH, sB, sHALF, sP, sROT, sT, sT2, sSPIN, sTAG, sMSK = "s28","s29","s30","s31","s32","s33","s34","s60","s61","s62","s74","s75"
    def stamp(i):
        if stamps and (stamps is True or i in stamps): E(f"s_memrealtime s[{76+2*i}:{77+2*i}]")
    def stamp_flush(n):
        if not stamps: return
        E("s_waitcnt lgkmcnt(0)")
        E("s_getreg_b32 s63, hwreg(HW_REG_XCC_ID)")
        E("s_mov_b32 s56, s26\ns_and_b32 s57, s27, 0xffff")
        E(f"s_mov_b32 s58, {WS_BYTES}\ns_mov_b32 s59, 0x20000")
        E(f"s_lshl_b32 {sT}, s2, 3\ns_add_u32 {sT}, {sT}, s3\ns_lshl_b32 {sT}, {sT}, 6\ns_add_u32 {sT}, {sT}, {STAMP}")
        E("s_mov_b64 exec, 1")
        for i in range(12):
            E(f"v_mov_b32 v{4+i}, " + (f"s{76+2*i}" if i in n else "0"))
        E("v_mov_b32 v16, s63\nv_mov_b32 v17, 0\nv_mov_b32 v18, 0\nv_mov_b32 v19, 0")
        for i in range(4):
            E(f"buffer_store_dwordx4 v[{4+4*i}:{7+4*i}], off, s[56:59], {sT} offset:{16*i}")
    def srd(r, ptr, off=None, size=0):
        if off is None:
            E(f"s_mov_b32 s{r}, s{ptr}\ns_and_b32 s{r+1}, s{ptr+1}, 0xffff")
        else:
            E(f"s_add_u32 s{r}, s{ptr}, {off}\ns_addc_u32 s{r+1}, s{ptr+1}, 0\ns_and_b32 s{r+1}, s{r+1}, 0xffff")
        E(f"s_mov_b32 s{r+2}, {size}\ns_mov_b32 s{r+3}, 0x20000")
    def row_allreduce(op, v):
        for m in ("quad_perm:[1,0,3,2]", "quad_perm:[2,3,0,1]", "row_half_mirror", "row_mirror"):
            E(f"{op}_dpp {v}, {v}, {v} {m} {DPPF}")
    def xrow_allreduce(op, v, t):
        for sw in ("v_permlane16_swap_b32", "v_permlane32_swap_b32"):
            E(f"v_mov_b32 {t}, {v}\n{sw} {v}, {t}\n{op} {v}, {v}, {t}")
    def masks(base, t):
        E(f"v_and_b32 {t}, 1, v0\nv_lshlrev_b32 {t}, 4, {t}\nv_mov_b32 v{base+3}, 0xffff\nv_lshlrev_b32 {t}, {t}, v{base+3}")
        E(f"v_bfe_u32 v{base+3}, v0, 1, 3")
        for jx in range(4):
            E(f"v_cmp_eq_u32 vcc, {jx}, v{base+3}\nv_cndmask_b32 v{base+jx}, 0, {t}, vcc")
    def masked_mfma(acc, pp, bc, breg, abuf, mbase, first=False):
        for jx in range(4):
            E(f"v_and_b32_dpp v{abuf+jx}, {pp}, v{mbase+jx} row_newbcast:{bc} {DPPF}")
        return f"v_mfma_f32_16x16x32_bf16 v[{acc}:{acc+3}], v[{abuf}:{abuf+3}], v[{breg}:{breg+3}], " + ("0" if first else f"v[{acc}:{acc+3}]")
    def tag(dst, idx, add=0):
        E(f"v_mul_u32_u24 {dst}, {TAGMUL}, {idx}\nv_add_u32 {dst}, {sTAG}, {dst}")
        if add: E(f"v_add_u32 {dst}, {TAGMUL*add}, {dst}")
        E(f"v_and_b32 {dst}, 0xff, {dst}")
    def spin_tail(lbl, sleep):
        E(f"s_cbranch_vccz {lbl}_ok")
        if sleep: E(f"s_sleep {sleep}")
        E(f"s_sub_u32 {sSPIN}, {sSPIN}, 1\ns_cmp_gt_i32 {sSPIN}, 0\ns_cbranch_scc1 {lbl}")
        E.label(lbl + "_ok")
    def sched(tab, n): return [d for (a, d) in tab if a <= n][-1]

    if header: E.raw(header.rstrip("\n"))
    E.raw(f"; @launch grid=(256,1,1) block=(512,1,1) lds={LDS_BYTES}")
    E.raw('.amdgcn_target "amdgcn-amd-amdhsa--gfx950"\n.text')
    E.raw(f".globl {KN}\n.p2align 8\n.type {KN},@function\n{KN}:")
    E("s_load_dwordx16 s[4:19], s[0:1], 0")
    E("s_load_dwordx8 s[20:27], s[0:1], 64")
    stamp(0)
    E("s_cmp_ge_u32 s2, 0x100\ns_cbranch_scc1 L_end")
    E("v_lshrrev_b32 v1, 6, v0\nv_and_b32 v0, 63, v0\nv_readfirstlane_b32 s3, v1")
    E(f"s_and_b32 {sX}, s2, 7\ns_lshr_b32 {sJ}, s2, 3")
    E(f"s_and_b32 {sH}, {sJ}, 24\ns_add_u32 {sH}, {sH}, {sX}")
    E(f"s_bfe_u32 {sB}, {sJ}, 0x20001\ns_and_b32 {sHALF}, {sJ}, 1")
    E(f"s_lshl_b32 {sP}, {sB}, 5\ns_add_u32 {sP}, {sP}, {sH}")
    E("v_lshrrev_b32 v1, 4, v0")
    E("s_cmp_ge_u32 s3, 4\ns_cbranch_scc1 L_h0")

    RB = 256 - 4*R; SB = RB - 32; BQ = SB - 16; DB = [BQ-8, BQ-4]; OA = BQ - 12; MB = BQ - 16
    assert MB >= 13
    T1, T2, MX, LS, NM = "v8", "v9", "v10", "v11", "v12"
    E(f"s_lshl_b32 {sT}, {sP}, 20\ns_lshl_b32 {sT2}, {sHALF}, {hbit}\ns_add_u32 {sT}, {sT}, {sT2}")
    E(f"s_sub_u32 {sT2}, 0x100000, {sT2}")
    E("s_lshl_b32 s35, s3, 12")
    E("v_and_b32 v2, 3, v0\nv_lshlrev_b32 v2, 4, v2\nv_lshl_add_u32 v2, v1, 6, v2")
    E("v_bfe_u32 v3, v0, 2, 2\nv_lshl_add_u32 v2, v3, 8, v2\nv_add_u32 v2, s35, v2")
    E("s_waitcnt lgkmcnt(0)")
    srd(36, 6, sT, sT2)
    NL = 256
    cur = [None]
    def goff(t):
        o = t << 14
        return (o & ((1 << hbit) - 1)) | ((o >> hbit) << (hbit + 1))
    def issue(n):
        t, i = (n % 128) // 4, n % 4
        if cur[0] != t: E(f"s_mov_b32 s44, {goff(t)}"); cur[0] = t
        r = RB + 4*(n % R)
        if n < 128: E(f"buffer_load_dwordx4 v[{r}:{r+3}], v2, s[36:39], s44 offen offset:{i*1024} {kv}")
        else:       E(f"buffer_load_dwordx4 v[{r}:{r+3}], v3, s[40:43], s44 offen offset:{i*1024} {kv}")
    st = {"issued": 0, "landed": 0}
    def wait_landed(k):
        if st["landed"] < k:
            E(f"s_waitcnt vmcnt({st['issued']-k})")
            if st["landed"] == 0: stamp(5)
            st["landed"] = k
    def paced_issue():
        n = st["issued"]
        wait_landed(n - sched(dsched, n) + 1)
        issue(n); st["issued"] += 1
    for n in range(sched(dsched, 0)): paced_issue()
    E("s_branch L_s1")

    E.label("L_h0")
    WB = 128
    E("s_sub_u32 s35, s3, 4")
    E(f"s_and_b32 {sROT}, {sJ}, 7\ns_lshl_b32 {sROT}, {sROT}, 2")
    E("v_and_b32 v2, 15, v0")
    E(f"v_lshl_add_u32 v3, v2, 1, {sROT}\nv_and_b32 v3, 31, v3\nv_lshl_add_u32 v3, v1, 5, v3")
    E("s_lshl_b32 s45, s35, 8\nv_lshl_add_u32 v4, v3, 1, s45")
    E("v_lshlrev_b32 v5, 4, v0")
    E("s_lshl_b32 s46, s35, 20\nv_lshlrev_b32 v6, 18, v1\nv_lshl_add_u32 v6, v2, 4, v6\nv_add_u32 v6, s46, v6")
    E(f"s_lshl_b32 s47, {sB}, 10\ns_lshl_b32 {sT}, {sH}, 8\ns_sub_u32 {sT2}, 0x400000, {sT}\ns_lshl_b32 s44, {sROT}, 13")
    E("s_waitcnt lgkmcnt(0)")
    srd(36, 4, None, 4096); srd(40, 10, sT, sT2)
    if "wq" in abl: E("s_mov_b32 s42, 0")
    E("buffer_load_dwordx4 v[28:31], v5, s[36:39], s47 offen")
    E("buffer_load_dword v7, v4, s[36:39], s47 offen")
    hq = {"ops": ["x", "x"], "issued": 0}
    def hwait(tok):
        if tok in hq["ops"]:
            k = len(hq["ops"]) - 1 - hq["ops"][::-1].index(tok)
            E(f"s_waitcnt vmcnt({len(hq['ops'])-k-1})"); hq["ops"] = hq["ops"][k+1:]
    def wq_issue():
        i = hq["issued"]
        if i >= 32: return
        if i >= DH: hwait(i - DH)
        E(f"buffer_load_dwordx4 v[{WB+4*i}:{WB+4*i+3}], v6, s[40:43], s44 offen {wfl}")
        if i < 31: E("s_add_u32 s44, s44, 0x2000\ns_and_b32 s44, s44, 0x3ffff")
        hq["ops"].append(i); hq["issued"] += 1
    for i in range(DH): wq_issue()
    E(f"s_add_u32 s48, s26, {EP}\ns_addc_u32 s49, s27, 0\ns_load_dword {sTAG}, s[48:49], 0")
    E("s_branch L_h1")

    E.label("L_s1")
    srd(40, 8, sT, sT2)
    E("v_lshl_add_u32 v3, v0, 4, s35")
    masks(MB, T1)
    for i in range(16): E(f"v_mov_b32 v{BQ+i}, 0")
    E(f"v_mov_b32 {MX}, 0xff800000\nv_mov_b32 {LS}, 0")
    E("v_and_b32 v4, 3, v0\nv_lshl_add_u32 v4, v1, 2, v4\nv_lshlrev_b32 v4, 5, v4")
    E("v_and_b32 v5, 15, v0\nv_lshlrev_b32 v5, 5, v5\nv_lshl_add_u32 v5, v1, 4, v5")
    E(f"s_lshl_b32 s46, s3, 9\ns_add_u32 s46, s46, {OP}\nv_add_u32 v5, s46, v5")
    E(f"s_lshl_b32 s46, s3, 3\ns_add_u32 s46, s46, {ML}\nv_mov_b32 v6, s46")
    E(f"s_mov_b32 s47, {SCALE}\ns_mov_b32 s48, {LOG2E}")
    while st["issued"] < R - early: paced_issue()
    stamp(1)
    E("s_barrier")
    stamp(2)
    for u in range(4):
        E(f"ds_read_b128 v[{SB+8*u}:{SB+8*u+3}], v4 offset:{QP+512*u}\nds_read_b128 v[{SB+8*u+4}:{SB+8*u+7}], v4 offset:{QP+512*u+16}")
    def maybe_issue():
        if st["issued"] < R: paced_issue()
    maybe_issue()
    E("s_waitcnt lgkmcnt(0)")
    for e in range(8): E(f"v_add_f32 v{SB+e}, v{SB+e}, v{SB+8+e}")
    for e in range(8): E(f"v_add_f32 v{SB+16+e}, v{SB+16+e}, v{SB+24+e}")
    for e in range(8): E(f"v_add_f32 v{SB+e}, v{SB+e}, v{SB+16+e}")
    for e in range(4): E(f"v_cvt_pk_bf16_f32 v{SB+8+e}, v{SB+2*e}, v{SB+2*e+1}")
    maybe_issue()
    for i in range(4):
        for e in range(4):
            E(f"v_mov_b32_dpp v{BQ+4*i+e}, v{SB+8+e} quad_perm:[0,1,2,3] row_mask:0xf bank_mask:{1<<i:#x}")
    def qk_post(t):
        d = DB[t & 1]
        return [f"v_mov_b32_dpp {T1}, v{d} quad_perm:[0,0,0,0] {DPPF}",
                f"v_mov_b32_dpp {T2}, v{d+2} quad_perm:[2,2,2,2] {DPPF}",
                None,
                f"v_add_f32_dpp {T1}, v{d+1}, {T1} quad_perm:[1,1,1,1] {DPPF}",
                f"v_add_f32_dpp {T2}, v{d+3}, {T2} quad_perm:[3,3,3,3] {DPPF}",
                f"v_add_f32 {T1}, {T1}, {T2}",
                None,
                f"v_cvt_pk_bf16_f32 {T1}, 0, {T1}",
                f"v_mul_f32 {T1}, s47, {T1}",
                None,
                f"v_cvt_pk_bf16_f32 v{SB+t}, 0, {T1}",
                f"v_max_f32 {MX}, {MX}, v{SB+t}"]
    def expo(t):
        E(f"v_fma_f32 {T1}, v{SB+t}, s48, {NM}\nv_exp_f32 {T1}, {T1}")
        E(f"v_add_f32 {LS}, {LS}, {T1}\nv_cvt_pk_bf16_f32 v{SB+t}, {T1}, {T1}")
    def kgroup(t):
        wait_landed(4*t + 4)
        d = DB[t & 1]
        mf = []
        for i in range(4):
            r = RB + 4*((4*t+i) % R)
            mf.append(f"v_mfma_f32_16x16x32_bf16 v[{d}:{d+3}], v[{r}:{r+3}], v[{BQ+4*i}:{BQ+4*i+3}], " + ("0" if i == 0 else f"v[{d}:{d+3}]"))
        E(mf.pop(0))
        if t > 0:
            for x in qk_post(t-1): E(x if x else mf.pop(0))
        for x in mf: E(x)
    def transition():
        for x in qk_post(31):
            if x: E(x)
        E(f"v_max_f32_dpp {MX}, {MX}, {MX} row_ror:4 {DPPF}\nv_max_f32_dpp {MX}, {MX}, {MX} row_ror:8 {DPPF}")
        xrow_allreduce("v_max_f32", MX, T1)
        E(f"v_mul_f32 {MX}, s48, {MX}\nv_sub_f32 {NM}, 0, {MX}")
        expo(0)
        stamp(3)
    def vload(n):
        t, i = (n - 128) // 4, n % 4
        r = RB + 4*(n % R)
        m = masked_mfma(OA, f"v{SB+t}", 4*i, r, BQ + 4*(n % 4), MB, first=(n == 128))
        k = n - 128
        if k < 31: expo(k + 1)
        if k == 31:
            E(f"v_add_f32_dpp {LS}, {LS}, {LS} row_ror:4 {DPPF}\nv_add_f32_dpp {LS}, {LS}, {LS} row_ror:8 {DPPF}")
            xrow_allreduce("v_add_f32", LS, T1)
            E(f"v_min_u32 {MX}, -2, {MX}\nv_min_u32 {LS}, -2, {LS}")
            E(f"ds_write_b64 v6, v[10:11]")
        return m
    done = 0
    while done < 128:
        lag = st["issued"] - done
        if lag > R - 1 or lag >= sched(dsched, st["issued"]) + 4 and st.get("run", 0) >= 2:
            kgroup(done // 4); done += 4; st["run"] = 0
        else:
            paced_issue(); st["run"] = st.get("run", 0) + 1
    paced_issue()
    transition()
    while done < NL:
        m = vload(done)
        while st["issued"] < NL and st["issued"] - done <= sched(dsched, st["issued"]) and st["issued"] - done <= R - 1:
            paced_issue()
        wait_landed(done + 1)
        E(m); done += 1
    E("s_mov_b32 exec_hi, 0")
    E(f"ds_write_b128 v5, v[{OA}:{OA+3}]")
    E("s_waitcnt lgkmcnt(0)")
    stamp(4)
    E("s_barrier")
    stamp_flush([0,1,2,3,4,5])
    E("s_endpgm")

    E.label("L_h1")
    MB = 12; AB = [16, 20]; AC = 24
    E(f"s_lshl_b32 {sP}, {sP}, 1\ns_add_u32 {sP}, {sP}, {sHALF}\ns_lshl_b32 {sP}, {sP}, 12")
    srd(52, 26, None, WS_BYTES)
    if cpf:
        E("s_getpc_b64 s[56:57]")
        E.label("L_pc")
        E(f"s_sub_u32 s56, s56, L_pc-{KN}\ns_subb_u32 s57, s57, 0\ns_and_b32 s57, s57, 0xffff")
        E(f"s_mov_b32 s58, L_end-{KN}\ns_mov_b32 s59, 0x20000")
        E(f"s_lshl_b32 s45, {sJ}, 2\ns_add_u32 s45, s45, s35\ns_lshl_b32 s45, s45, 8\nv_lshlrev_b32 v40, 2, v0")
        E("buffer_load_dword v41, v40, s[56:59], s45 offen")
        hq["ops"].append("c")
    masks(MB, "v8")
    hwait("x")
    stamp(1)
    for e in range(4): E(f"v_lshlrev_b32 v{32+2*e}, 16, v{28+e}\nv_and_b32 v{33+2*e}, 0xffff0000, v{28+e}")
    wq_issue()
    E("v_add_f32 v8, v32, v33\nv_add_f32 v9, v34, v35\nv_add_f32 v10, v36, v37\nv_add_f32 v11, v38, v39")
    E("v_add_f32 v8, v8, v9\nv_add_f32 v10, v10, v11\nv_add_f32 v8, v8, v10")
    for i in range(DH - 1): wq_issue()
    row_allreduce("v_add_f32", "v8"); xrow_allreduce("v_add_f32", "v8", "v9")
    E("v_mul_f32 v8, 0x3b000000, v8")
    for e in range(8): E(f"v_sub_f32 v{32+e}, v{32+e}, v8")
    E("v_mul_f32 v9, v32, v32\nv_mul_f32 v10, v33, v33")
    for e in range(2, 8): E(f"v_fmac_f32 v{9+(e&1)}, v{32+e}, v{32+e}")
    E("v_add_f32 v9, v9, v10")
    row_allreduce("v_add_f32", "v9"); xrow_allreduce("v_add_f32", "v9", "v10")
    def ln_finish(mean, var):
        E(f"v_mul_f32 {var}, 0x3b000000, {var}\nv_cvt_pk_bf16_f32 {mean}, 0, {mean}\nv_cvt_pk_bf16_f32 {var}, 0, {var}")
        E(f"v_add_f32 {var}, {EPS:#x}, {var}\nv_cvt_pk_bf16_f32 {var}, 0, {var}\nv_sqrt_f32 {var}, {var}")
        E(f"v_cvt_pk_bf16_f32 {var}, 0, {var}\nv_rcp_f32 {var}, {var}")
    ln_finish("v8", "v9")
    E("v_lshlrev_b32 v10, 16, v7\nv_and_b32 v11, 0xffff0000, v7")
    for r in ("v10", "v11"):
        E(f"v_sub_f32 {r}, {r}, v8\nv_cvt_pk_bf16_f32 {r}, 0, {r}\nv_mul_f32 {r}, {r}, v9\nv_cvt_pk_bf16_f32 {r}, {r}, {r}")
    def project(pp, streaming):
        pend = None
        for i in range(32):
            m = masked_mfma(AC, pp[i & 1], i >> 1, WB+4*i, AB[i & 1], MB, first=(i == 0))
            if pend: E(pend)
            if streaming:
                if i >= DH: wq_issue()
                hwait(i)
            pend = m
        E(pend)
    project(("v10", "v11"), True)
    E("v_lshlrev_b32 v8, 5, v2\nv_lshl_add_u32 v8, v1, 4, v8\ns_lshl_b32 s46, s35, 9\nv_add_u32 v8, s46, v8")
    E(f"v_and_b32 v9, 3, v0\nv_lshlrev_b32 v9, 3, v9\nv_add_u32 v9, {ML}, v9\nv_mov_b32 v10, -1\nv_mov_b32 v11, -1")
    E("s_mov_b32 exec_hi, 0")
    E(f"ds_write_b128 v8, v[{AC}:{AC+3}] offset:{QP}")
    E("ds_write_b64 v9, v[10:11]")
    E("s_mov_b32 exec_hi, -1")
    E("s_waitcnt lgkmcnt(0)")
    stamp(3)
    E("s_barrier")
    E(f"s_add_u32 {sTAG}, {sTAG}, 1\ns_mov_b32 {sMSK}, 0xffffff00\ns_mov_b32 {sSPIN}, 0x40000")
    E(f"s_lshl_b32 {sT}, {sH}, 17")
    srd(48, 12, sT, 0 if "wo" in abl else 0x20000)
    E(f"s_lshl_b32 s45, s35, 8\nv_lshlrev_b32 v37, 15, v1\nv_lshl_add_u32 v37, v2, 4, v37\nv_add_u32 v37, s45, v37\ns_lshl_b32 s63, {sROT}, 10")
    def wo_loads(a, b, tab):
        for i in range(a, b):
            d = sched(tab, i)
            if i - a >= d: E(f"s_waitcnt vmcnt({d-1})")
            E(f"buffer_load_dwordx4 v[{WB+4*i}:{WB+4*i+3}], v37, s[48:51], s63 offen {wfl}")
            if i < 31: E("s_add_u32 s63, s63, 0x400\ns_and_b32 s63, s63, 0x7fff")
        E("s_waitcnt vmcnt(0)")
    E("s_cmp_eq_u32 s35, 1\ns_cbranch_scc1 L_H1")
    E("s_cmp_lg_u32 s35, 0\ns_cbranch_scc1 L_H23")
    E(f"s_and_b32 s45, {sJ}, 22\ns_cmp_eq_u32 s45, 22\ns_cbranch_scc1 L_H0wo")
    if "f1" in abl: E("s_branch L_H0wo")
    E(f"s_cmp_ge_u32 {sJ}, 24\ns_cselect_b32 s45, 2, 0\ns_sub_u32 s46, {sJ}, s45")
    E(f"s_mul_i32 s45, {sX}, 224\ns_lshl_b32 s46, s46, 3\ns_add_u32 s45, s45, s46")
    E("v_lshlrev_b32 v4, 6, v0")
    for t in range(4): E(f"buffer_load_dwordx4 v[{40+4*t}:{43+4*t}], v4, s[36:39], 0 offen offset:{16*t}")
    E(f"s_lshl_b32 {sT}, s45, 1\ns_sub_u32 {sT2}, {512*3584}, {sT}")
    srd(40, 16, sT, sT2); srd(56, 18, sT, sT2)
    E("v_mul_u32_u24 v6, 0xe00, v0\nv_lshlrev_b32 v7, 5, v0")
    f1 = {"n": 0}
    def f1_issue():
        n = f1["n"]
        if n >= 16: return
        if n >= DF: E(f"s_waitcnt vmcnt({DF-1})")
        if n & 1 == 0: E(f"s_mov_b32 s44, {(n>>1)*64*3584}")
        E(f"buffer_load_dwordx4 v[{WB+4*n}:{WB+4*n+3}], v6, {'s[56:59]' if n & 1 else 's[40:43]'}, s44 offen {ffl}")
        f1["n"] += 1
    for n in range(DF + 1): f1_issue()
    for e in range(16): E(f"v_lshlrev_b32 v{56+2*e}, 16, v{40+e}\nv_and_b32 v{57+2*e}, 0xffff0000, v{40+e}")
    E("v_add_f32 v28, v56, v57\nv_add_f32 v29, v58, v59")
    for e in range(4, 32): E(f"v_add_f32 v{28+(e&1)}, v{28+(e&1)}, v{56+e}")
    E("v_add_f32 v28, v28, v29")
    row_allreduce("v_add_f32", "v28")
    E("v_mul_f32 v28, 0x3b000000, v28\nv_mov_b32 v29, 0\nv_mov_b32 v30, 0")
    for e in range(32): E(f"v_sub_f32 v31, v{56+e}, v28\nv_fmac_f32 v{29+(e&1)}, v31, v31")
    E("v_add_f32 v29, v29, v30")
    row_allreduce("v_add_f32", "v29")
    ln_finish("v28", "v29")
    for e in range(32): E(f"v_sub_f32 v{56+e}, v{56+e}, v28\nv_cvt_pk_bf16_f32 v{56+e}, 0, v{56+e}\nv_mul_f32 v{56+e}, v{56+e}, v29")
    for e in range(16): E(f"v_cvt_pk_bf16_f32 v{40+e}, v{56+2*e}, v{57+2*e}")
    for t in range(4): E(f"ds_write_b128 v4, v[{40+4*t}:{43+4*t}] offset:{XN+16*t}")
    written = 0
    while written < 16:
        landed = f1["n"] - DF if f1["n"] < 16 else written
        while written < landed:
            E(f"ds_write_b128 v7, v[{WB+4*written}:{WB+4*written+3}] offset:{WT+2048*(written>>1)+16*(written&1)}"); written += 1
        if f1["n"] < 16: f1_issue()
        else:
            E(f"s_waitcnt vmcnt({16-written-1})")
            E(f"ds_write_b128 v7, v[{WB+4*written}:{WB+4*written+3}] offset:{WT+2048*(written>>1)+16*(written&1)}"); written += 1
    E("v_lshlrev_b32 v6, 8, v1\nv_lshl_add_u32 v6, v2, 3, v6")
    E("v_and_b32 v7, 3, v0\nv_lshlrev_b32 v7, 10, v7\nv_lshl_add_u32 v7, v1, 4, v7")
    E("s_waitcnt lgkmcnt(0)")
    for s0 in range(0, 16, 4):
        for s in range(s0, s0+4):
            r = 40 + 8*(s & 3)
            E(f"ds_read_b64_tr_b16 v[{r}:{r+1}], v6 offset:{WT+1024*s}\nds_read_b64_tr_b16 v[{r+2}:{r+3}], v6 offset:{WT+1024*s+128}")
            E(f"ds_read_b128 v[{r+4}:{r+7}], v7 offset:{XN+64*s}")
        E("s_waitcnt lgkmcnt(0)")
        for s in range(s0, s0+4):
            r = 40 + 8*(s & 3)
            E(f"v_mfma_f32_16x16x32_bf16 v[{AC}:{AC+3}], v[{r+4}:{r+7}], v[{r}:{r+3}], " + ("0" if s == 0 else f"v[{AC}:{AC+3}]"))
        E("s_nop 3")
    E("v_and_b32 v6, 1, v0\nv_lshlrev_b32 v6, 2, v6")
    for r in range(4): tag(f"v{44+r}", "v6", r)
    for r in range(4): E(f"v_cvt_pk_bf16_f32 v{40+r}, 0, v{AC+r}")
    for r in range(4): E(f"v_max_f32 v{28+r}, 0, v{40+r}")
    for r in range(4): E(f"v_mul_f32_dpp v{28+r}, v{40+r}, v{28+r} row_ror:8 {DPPF}")
    for r in range(4): E(f"v_cvt_pk_bf16_f32 v{28+r}, 0, v{28+r}")
    for r in range(4): E(f"v_or_b32 v{28+r}, v{28+r}, v{44+r}")
    E(f"s_lshl_b32 s45, s45, 4\ns_add_u32 s45, s45, {HB}")
    E("s_mov_b64 exec, 0xff")
    E(f"buffer_store_dwordx4 v[28:31], v5, s[52:55], s45 offen {hs}")
    E("s_mov_b64 exec, -1")
    stamp(4)
    E.fence()
    E.label("L_H0wo")
    wo_loads(0, 32, wo0)
    stamp(5)
    E("s_branch L_tail")
    E.label("L_H1")
    wo_loads(0, f2at, wo1)
    E(f"s_mul_i32 {sT}, {sJ}, {56*1024}\ns_lshl_b32 s45, {sX}, 7\ns_add_u32 {sT}, {sT}, s45\ns_sub_u32 {sT2}, {1792*1024}, {sT}")
    srd(40, 20, sT, sT2)
    E("v_and_b32 v7, 7, v0\nv_lshrrev_b32 v36, 3, v0\nv_lshlrev_b32 v4, 10, v36\nv_lshl_add_u32 v4, v7, 4, v4")
    for i in range(7):
        if i in (3, 5): E("s_waitcnt vmcnt(1)")
        E(f"s_mov_b32 s44, {i*8192}\nbuffer_load_dwordx4 v[{40+4*i}:{43+4*i}], v4, s[40:43], s44 offen {dfl}")
    E(f"s_and_b32 s46, {sJ}, 7\ns_lshl_b32 s46, s46, 4\ns_add_u32 s46, s46, s45")
    E(f"s_lshr_b32 s47, {sJ}, 3")
    E("s_lshl_b32 s72, s47, 10\ns_add_u32 s72, s72, s46")
    E("v_lshlrev_b32 v33, 1, v7\nbuffer_load_ushort v34, v33, s[36:39], s72 offen")
    E("v_lshlrev_b32 v35, 12, v36\nv_lshl_add_u32 v35, v7, 2, v35\ns_lshl_b32 s73, s46, 1\nv_add_u32 v35, s73, v35")
    E("s_lshl_b32 s64, s47, 18")
    for t in range(1, 8): E(f"s_add_u32 s{64+t}, s{63+t}, 0x8000")
    tag("v38", "v7")
    E("v_and_b32 v6, 1, v36\nv_lshlrev_b32 v39, 2, v6")
    for r in range(4): tag(f"v{16+r}", "v39", r)
    E(f"s_mul_i32 s45, {sJ}, {56*16}\ns_add_u32 s45, s45, {HB}\nv_lshlrev_b32 v4, 4, v36")
    E.fence()
    E.label("L_ph")
    for i in range(7):
        E(f"buffer_load_dwordx4 v[{68+4*i}:{71+4*i}], v4, s[52:55], s45 offen offset:{128*i} {hs}")
    E("s_waitcnt vmcnt(0)")
    for i in range(28): E(f"v_xor_b32 v{68+i}, v{68+i}, v{16+(i&3)}")
    E("v_or_b32 v28, v68, v69")
    for i in range(2, 28, 2): E(f"v_or3_b32 v28, v28, v{68+i}, v{69+i}")
    E("v_and_b32 v28, 0xffff, v28\nv_cmp_ne_u32 vcc, 0, v28\ns_nop 4")
    if "f1" in abl: E("s_mov_b64 vcc, 0")
    spin_tail("L_ph", 16)
    for e in range(32): E(f"v_mov_b32 v{96+e}, 0")
    E("v_lshlrev_b32 v34, 16, v34")
    for i in range(7):
        for e in range(4):
            E(f"v_lshlrev_b32 v28, 16, v{40+4*i+e}\nv_and_b32 v29, 0xffff0000, v{40+4*i+e}")
            for bb in range(4):
                E(f"v_fmac_f32 v{96+8*bb+2*e}, v{68+4*i+bb}, v28\nv_fmac_f32 v{97+8*bb+2*e}, v{68+4*i+bb}, v29")
    for e in range(16): E(f"v_permlane32_swap_b32 v{96+e}, v{112+e}")
    for e in range(16): E(f"v_add_f32 v{96+e}, v{96+e}, v{112+e}")
    for e in range(8): E(f"v_permlane16_swap_b32 v{96+e}, v{104+e}")
    for e in range(8): E(f"v_add_f32 v{96+e}, v{96+e}, v{104+e}")
    for e in range(4): E(f"v_add_f32_dpp v{28+e}, v{96+e}, v{96+e} row_ror:8 row_mask:0xf bank_mask:0x3")
    for e in range(4): E(f"v_add_f32_dpp v{28+e}, v{100+e}, v{100+e} row_ror:8 row_mask:0xf bank_mask:0xc")
    for e in range(4): E(f"v_and_or_b32 v{28+e}, v{28+e}, {sMSK}, v{16+e}")
    E("v_lshlrev_b32 v4, 8, v1\nv_lshl_add_u32 v4, v7, 5, v4\nv_lshl_add_u32 v4, v6, 4, v4")
    E(f"buffer_store_dwordx4 v[28:31], v4, s[52:55], {sP} offen offset:2048 {hs}")
    wo_loads(f2at, 32, wo1)
    stamp(5)
    E("v_lshrrev_b32 v4, 1, v36\nv_lshlrev_b32 v4, 18, v4\nv_lshl_add_u32 v4, v6, 12, v4\nv_lshl_add_u32 v4, v7, 2, v4")
    E(f"s_and_b32 s45, {sJ}, 7\ns_lshl_b32 s45, s45, 5\ns_lshl_b32 s46, s47, 8\ns_add_u32 s45, s45, s46\nv_add_u32 v4, s45, v4")
    E(f"s_lshl_b32 s44, {sX}, 13\ns_add_u32 s45, s44, 0x10000\ns_add_u32 s46, s45, 0x10000\ns_add_u32 s73, s46, 0x10000")
    E.fence()
    E.label("L_pd")
    for t, so in enumerate(("s44", "s45", "s46", "s73")):
        E(f"buffer_load_dword v{40+t}, v4, s[52:55], {so} offen offset:2048 {hs}")
    E("s_waitcnt vmcnt(0)")
    for t in range(4): E(f"v_xor_b32 v{40+t}, v{40+t}, v38")
    E("v_or_b32 v28, v40, v41\nv_or3_b32 v28, v28, v42, v43\nv_and_b32 v28, 0xff, v28\nv_cmp_ne_u32 vcc, 0, v28\ns_nop 4")
    spin_tail("L_pd", 16)
    E("v_add_f32 v40, v40, v41\nv_add_f32 v42, v42, v43\nv_add_f32 v40, v40, v42")
    E(f"v_add_f32_dpp v40, v40, v40 row_ror:8 {DPPF}")
    xrow_allreduce("v_add_f32", "v40", "v41")
    E(f"v_cvt_pk_bf16_f32 v40, 0, v40\nv_mul_f32 v41, 0xbfb8aa3b, v40\nv_exp_f32 v41, v41\nv_add_f32 v41, 1.0, v41")
    E("v_rcp_f32 v41, v41\nv_mul_f32 v41, v40, v41\nv_cvt_pk_bf16_f32 v32, 0, v41")
    stamp(4)
    E.fence()
    E("s_branch L_tail")
    E.label("L_H23")
    wo_loads(0, 32, wo23)
    stamp(5)
    E("s_cmp_lg_u32 s35, 2\ns_cbranch_scc1 L_tail")
    E("v_and_b32 v7, 7, v0")
    tag("v38", "v7")
    E("v_lshlrev_b32 v7, 2, v7\nv_and_b32 v6, 1, v0\nv_cmp_eq_u32 s[64:65], 1, v6")
    E.fence()
    E.label("L_ml")
    E("ds_read_b64 v[28:29], v9\ns_waitcnt lgkmcnt(0)")
    E("v_max_u32 v30, v28, v29\nv_cmp_eq_u32 vcc, -1, v30\ns_nop 4")
    spin_tail("L_ml", 8)
    E(f"v_max_f32_dpp v30, v28, v28 quad_perm:[1,0,3,2] {DPPF}\nv_max_f32_dpp v30, v30, v30 quad_perm:[2,3,0,1] {DPPF}")
    E(f"v_and_b32 v30, {sMSK}, v30")
    E("v_sub_f32 v31, v28, v30\nv_exp_f32 v31, v31\nv_mul_f32 v31, v31, v29")
    E(f"v_add_f32_dpp v31, v31, v31 quad_perm:[1,0,3,2] {DPPF}\nv_add_f32_dpp v31, v31, v31 quad_perm:[2,3,0,1] {DPPF}")
    E(f"v_and_b32 v31, {sMSK}, v31")
    E("v_cndmask_b32 v36, v30, v31, s[64:65]\nv_or_b32 v36, v36, v38")
    E("s_mov_b64 exec, 0xff")
    E(f"buffer_store_dword v36, v7, s[52:55], {sP} offen offset:3072 {hs}")
    E(f"s_mov_b64 exec, -1\ns_xor_b32 s45, {sP}, 0x1000")
    E.fence()
    E.label("L_pm")
    E(f"buffer_load_dword v40, v7, s[52:55], s45 offen offset:3072 {hs}\ns_waitcnt vmcnt(0)")
    E("v_xor_b32 v40, v40, v38\nv_and_b32 v41, 0xff, v40\nv_cmp_ne_u32 vcc, 0, v41\ns_nop 4")
    spin_tail("L_pm", 8)
    E(f"v_mov_b32_dpp v36, v40 quad_perm:[0,0,0,0] {DPPF}\nv_mov_b32_dpp v39, v40 quad_perm:[1,1,1,1] {DPPF}")
    E("v_max_f32 v41, v30, v36\nv_sub_f32 v30, v30, v41\nv_sub_f32 v36, v36, v41\nv_sub_f32 v28, v28, v41")
    E("v_exp_f32 v30, v30\nv_exp_f32 v36, v36\nv_exp_f32 v28, v28")
    E("v_mul_f32 v31, v31, v30\nv_mul_f32 v39, v39, v36\nv_add_f32 v31, v31, v39\nv_rcp_f32 v31, v31\nv_mul_f32 v28, v28, v31")
    E(f"v_and_b32 v29, 3, v0\nv_lshlrev_b32 v29, 2, v29\nds_write_b32 v29, v28 offset:{FW}")
    E("s_waitcnt lgkmcnt(0)")
    stamp(6)
    E.fence()
    E.label("L_tail")
    E("v_lshlrev_b32 v3, 2, v3\nv_mov_b32 v4, 0\nv_lshlrev_b32 v6, 2, v1")
    for r in range(4): tag(f"v{48+r}", "v6", r)
    srd(40, 22, None, 4096)
    E("s_barrier")
    stamp(7)
    E(f"ds_read_b128 v[28:31], v4 offset:{FW}")
    for w in range(4): E(f"ds_read_b64 v[{40+2*w}:{41+2*w}], v3 offset:{OP+512*w}")
    E("s_waitcnt lgkmcnt(0)")
    E("v_mul_f32 v10, v28, v40\nv_mul_f32 v11, v28, v41")
    for w in range(1, 4): E(f"v_fmac_f32 v10, v{28+w}, v{40+2*w}\nv_fmac_f32 v11, v{28+w}, v{41+2*w}")
    E("v_cvt_pk_bf16_f32 v10, v10, v10\nv_cvt_pk_bf16_f32 v11, v11, v11")
    project(("v10", "v11"), False)
    E("s_mov_b32 exec_hi, 0")
    for r in range(4): E(f"v_and_or_b32 v{AC+r}, v{AC+r}, {sMSK}, v{48+r}")
    E(f"buffer_store_dwordx4 v[{AC}:{AC+3}], v8, s[52:55], {sP} offen {hs}")
    E("s_mov_b32 exec_hi, -1")
    stamp(8)
    E("s_cmp_lg_u32 s35, 1\ns_cbranch_scc1 L_done")
    E.label("L_poll")
    for t in range(8): E(f"buffer_load_dword v{40+t}, v35, s[52:55], s{64+t} offen {hs}")
    for t in range(8):
        E(f"s_waitcnt vmcnt({7-t})\nv_xor_b32 v{40+t}, v{40+t}, v38")
    E("v_or3_b32 v28, v40, v41, v42\nv_or3_b32 v29, v43, v44, v45\nv_or3_b32 v28, v28, v46, v47\nv_or_b32 v28, v28, v29")
    E("v_and_b32 v28, 0xff, v28\nv_cmp_ne_u32 vcc, 0, v28")
    E("v_add_f32 v40, v40, v41\nv_add_f32 v42, v42, v43\nv_add_f32 v44, v44, v45\nv_add_f32 v46, v46, v47\nv_add_f32 v40, v40, v42")
    spin_tail("L_poll", 0)
    E("v_add_f32 v44, v44, v46\nv_add_f32 v40, v40, v44")
    E(f"v_add_f32_dpp v40, v40, v40 row_ror:8 {DPPF}")
    xrow_allreduce("v_add_f32", "v40", "v41")
    E("v_cvt_pk_bf16_f32 v40, 0, v40\nv_mul_f32 v40, v40, v32\nv_cvt_pk_bf16_f32 v40, 0, v40\nv_add_f32 v40, v40, v34\nv_cvt_pk_bf16_f32 v40, v40, v40")
    E("s_mov_b64 exec, 0xff")
    E("buffer_store_short v40, v33, s[40:43], s72 offen")
    stamp(9)
    E("s_cmp_lg_u32 s2, 0xff\ns_cbranch_scc1 L_done")
    E(f"s_mov_b64 exec, 1\nv_mov_b32 v41, {sTAG}\ns_mov_b32 s45, {EP}\nbuffer_store_dword v41, off, s[52:55], s45 {hs}")
    E.fence()
    E.label("L_done")
    stamp_flush(list(range(10)))
    E.label("L_end")
    E("s_endpgm")
    E.raw(f""".section .rodata,"a"
.p2align 6
.amdhsa_kernel {KN}
  .amdhsa_next_free_vgpr 256
  .amdhsa_next_free_sgpr 102
  .amdhsa_accum_offset 256
  .amdhsa_group_segment_fixed_size 0
  .amdhsa_kernarg_size 96
  .amdhsa_user_sgpr_count 2
  .amdhsa_user_sgpr_kernarg_segment_ptr 1
  .amdhsa_system_sgpr_workgroup_id_x 1
.end_amdhsa_kernel""")
    return E.text()

if __name__ == "__main__":
    kw = eval("dict(" + (sys.argv[2] if len(sys.argv) > 2 else "") + ")")
    open(sys.argv[1], "w").write(gen(**kw))
```

```python
import sys
from emit import Emit
KN = "recurrent_scan__mha_block_cached__glu_gated_reglu__decode_kernel"
DPPF = "row_mask:0xf bank_mask:0xf"
QP, OP, ML, FW, XN, WT = 0, 2048, 4096, 4160, 4608, 8704
WSG = 8704 + 28672
LDS_BYTES = WSG + 16384
OPS = 272
REC = 4096
GB = 256 * REC
DBX = GB + 65536
EP = DBX + 65536
STAMP = 16 << 20
WS_BYTES = 32 << 20
LOG2E = 0x3fb8aa3b
SCALE = 0x3db504f3
EPS = 0x3727c5ac
TAGMUL = 37

STAMPS = [("S start", slice(0,4), 0), ("S first", slice(0,4), 5), ("ringfull", slice(0,4), 1), ("B1", slice(0,4), 2), ("Kdone", slice(0,4), 3), ("Vdone", slice(0,4), 4),
          ("H x", slice(4,8), 1), ("H q", slice(4,8), 3), ("F1", slice(4,5), 4), ("F2", slice(4,5), 6), ("H1 g", slice(5,6), 4), ("wo", slice(4,8), 5), ("fw", slice(6,7), 6),
          ("B2", slice(4,8), 7), ("ystore", slice(4,8), 8), ("out", slice(5,6), 9)]

def gen(dsched=((0,2),(4,5),(224,8)), R=44, DH=4, hmap=3, pk=0, DH0=0, cu=2, psleep=0, ypre=1, mlat=22, wo0=((0,2),), wof1=((0,3),), wof2=((0,2),), wo123=((0,1),(16,2)), f2at=16, DF=6, DF2=3, rot=1, roto=0, DH2=3, pf=1, pfl='',
        kv="nt", wfl="", qfl="", ffl="", hbit=15, stamps=False, cpf=True, hs="sc1", ys="sc1", early=2, header="", abl=(), NLD=20, ofl=""):
    E = Emit()
    sX, sJ, sH, sB, sHALF, sP, sROT, sT, sT2, sSPIN, sTAG, sMSK = "s28","s29","s30","s31","s32","s33","s34","s60","s61","s62","s74","s75"
    def stamp(i):
        if stamps and (stamps is True or i in stamps): E(f"s_memrealtime s[{76+2*i}:{77+2*i}]")
    def stamp_flush(n):
        if not stamps: return
        E("s_waitcnt lgkmcnt(0)")
        E("s_getreg_b32 s63, hwreg(HW_REG_XCC_ID)")
        E("s_mov_b32 s56, s26\ns_and_b32 s57, s27, 0xffff")
        E(f"s_mov_b32 s58, {WS_BYTES}\ns_mov_b32 s59, 0x20000")
        E(f"s_lshl_b32 {sT}, s2, 3\ns_add_u32 {sT}, {sT}, s3\ns_lshl_b32 {sT}, {sT}, 6\ns_add_u32 {sT}, {sT}, {STAMP}")
        E("s_mov_b64 exec, 1")
        for i in range(12):
            E(f"v_mov_b32 v{4+i}, " + (f"s{76+2*i}" if i in n else "0"))
        E("v_mov_b32 v16, s63\nv_mov_b32 v17, 0\nv_mov_b32 v18, 0\nv_mov_b32 v19, 0")
        for i in range(4):
            E(f"buffer_store_dwordx4 v[{4+4*i}:{7+4*i}], off, s[56:59], {sT} offset:{16*i}")
    def srd(r, ptr, off=None, size=0):
        if off is None:
            E(f"s_mov_b32 s{r}, s{ptr}\ns_and_b32 s{r+1}, s{ptr+1}, 0xffff")
        else:
            E(f"s_add_u32 s{r}, s{ptr}, {off}\ns_addc_u32 s{r+1}, s{ptr+1}, 0\ns_and_b32 s{r+1}, s{r+1}, 0xffff")
        E(f"s_mov_b32 s{r+2}, {size}\ns_mov_b32 s{r+3}, 0x20000")
    def row_allreduce(op, v):
        for m in ("quad_perm:[1,0,3,2]", "quad_perm:[2,3,0,1]", "row_half_mirror", "row_mirror"):
            E(f"{op}_dpp {v}, {v}, {v} {m} {DPPF}")
    def xrow_allreduce(op, v, t):
        for sw in ("v_permlane16_swap_b32", "v_permlane32_swap_b32"):
            E(f"v_mov_b32 {t}, {v}\n{sw} {v}, {t}\n{op} {v}, {v}, {t}")
    def masks(base, t):
        E(f"v_and_b32 {t}, 1, v0\nv_lshlrev_b32 {t}, 4, {t}\nv_mov_b32 v{base+3}, 0xffff\nv_lshlrev_b32 {t}, {t}, v{base+3}")
        E(f"v_bfe_u32 v{base+3}, v0, 1, 3")
        for jx in range(4):
            E(f"v_cmp_eq_u32 vcc, {jx}, v{base+3}\nv_cndmask_b32 v{base+jx}, 0, {t}, vcc")
    def masked_mfma(acc, pp, bc, breg, abuf, mbase, first=False):
        for jx in range(4):
            E(f"v_and_b32_dpp v{abuf+jx}, {pp}, v{mbase+jx} row_newbcast:{bc} {DPPF}")
        return f"v_mfma_f32_16x16x32_bf16 v[{acc}:{acc+3}], v[{abuf}:{abuf+3}], v[{breg}:{breg+3}], " + ("0" if first else f"v[{acc}:{acc+3}]")
    def tag(dst, idx, add=0):
        E(f"v_mul_u32_u24 {dst}, {TAGMUL}, {idx}\nv_add_u32 {dst}, {sTAG}, {dst}")
        if add: E(f"v_add_u32 {dst}, {TAGMUL*add}, {dst}")
        E(f"v_and_b32 {dst}, 0xff, {dst}")
    def spin_tail(lbl, sleep):
        E(f"s_cbranch_vccz {lbl}_ok")
        if sleep: E(f"s_sleep {sleep}")
        E(f"s_sub_u32 {sSPIN}, {sSPIN}, 1\ns_cmp_gt_i32 {sSPIN}, 0\ns_cbranch_scc1 {lbl}")
        E.label(lbl + "_ok")
    def sched(tab, n):
        d = [d for (a, d) in tab if a <= n][-1]
        if isinstance(d, float):
            lo = int(d); return lo + (1 if (n % 16) < round((d - lo) * 16) else 0)
        return d

    if header: E.raw(header.rstrip("\n"))
    E.raw(f"; @launch grid=(256,1,1) block=(512,1,1) lds={LDS_BYTES + 4096*NLD}")
    E.raw('.amdgcn_target "amdgcn-amd-amdhsa--gfx950"\n.text')
    E.raw(f".globl {KN}\n.p2align 8\n.type {KN},@function\n{KN}:")
    E("s_load_dwordx16 s[4:19], s[0:1], 0")
    E("s_load_dwordx8 s[20:27], s[0:1], 64")
    stamp(0)
    E("s_cmp_ge_u32 s2, 0x100\ns_cbranch_scc1 L_end")
    E("v_lshrrev_b32 v1, 6, v0\nv_and_b32 v0, 63, v0\nv_readfirstlane_b32 s3, v1")
    E(f"s_and_b32 {sX}, s2, 7\ns_lshr_b32 {sJ}, s2, 3")
    if hmap == 0: E(f"s_and_b32 {sH}, {sJ}, 24\ns_add_u32 {sH}, {sH}, {sX}")
    else: E(f"s_lshr_b32 {sH}, {sJ}, 3\ns_mul_i32 {sH}, {sH}, 9\ns_xor_b32 {sH}, {sH}, {sX}")
    E(f"s_bfe_u32 {sB}, {sJ}, 0x20001\ns_and_b32 {sHALF}, {sJ}, 1")
    E(f"s_lshl_b32 {sP}, {sB}, 5\ns_add_u32 {sP}, {sP}, {sH}")
    E("v_lshrrev_b32 v1, 4, v0")
    E("s_cmp_ge_u32 s3, 4\ns_cbranch_scc1 L_h0")

    RB = 256 - 4*R; SB = RB - 32; BQ = SB - 16; DB = [BQ-8, BQ-4]; OA = BQ - 12; MB = BQ - 16
    assert MB >= 16
    T1, T2, MX, LS, NM = "v8", "v9", "v10", "v11", "v12"
    def k_setup():
        E(f"s_lshl_b32 {sT}, {sP}, 20\ns_lshl_b32 {sT2}, {sHALF}, {hbit}\ns_add_u32 {sT}, {sT}, {sT2}")
        E(f"s_sub_u32 {sT2}, 0x100000, {sT2}")
        E("s_lshl_b32 s35, s3, 12")
        E("v_and_b32 v2, 3, v0\nv_lshlrev_b32 v2, 4, v2\nv_lshl_add_u32 v2, v1, 6, v2")
        E("v_bfe_u32 v3, v0, 2, 2\nv_lshl_add_u32 v2, v3, 8, v2\nv_add_u32 v2, s35, v2")
    k_setup()
    if pf == 3:
        E(f"s_lshl2_add_u32 s50, {sJ}, s3")
        E("v_and_b32 v13, 15, v0\nv_lshlrev_b32 v13, 4, v13\nv_lshl_add_u32 v13, v1, 13, v13\ns_lshl_b32 s51, s50, 15")
        for k in range(4):
            if hmap == 0: E(f"s_add_u32 s{64+k}, {sX}, {8*k}")
            else: E(f"s_xor_b32 s{64+k}, {sX}, {9*k}")
            E(f"s_lshl_b32 s{64+k}, s{64+k}, 8\ns_add_u32 s{64+k}, s{64+k}, s51")
    E("s_waitcnt lgkmcnt(0)")
    if pf == 3: srd(56, 10, None, 0 if "wq" in abl else 0x400000)
    else: srd(36, 6, sT, sT2)
    cur = [None]
    def goff(t):
        o = t << 14
        return (o & ((1 << hbit) - 1)) | ((o >> hbit) << (hbit + 1))
    NL = 256 - NLD
    L0 = R - 4
    NK = 128 - NLD
    def tensor_index(n): return n if n < L0 else n + NLD
    def issue(n):
        lds = isinstance(n, tuple)
        a_ = L0 + n[1] if lds else tensor_index(n)
        t, i = (a_ % 128) // 4, a_ % 4
        if cur[0] != t:
            E(f"s_mov_b32 s44, {goff(t)}"); cur[0] = t
            if lds: E(f"s_add_u32 m0, s49, {n[1] * 1024}")
        if lds: E(f"buffer_load_dwordx4 v2, s[36:39], s44 offen offset:{i*1024} {kv} lds"); return
        r = RB + 4*(n % R)
        if a_ < 128: E(f"buffer_load_dwordx4 v[{r}:{r+3}], v2, s[36:39], s44 offen offset:{i*1024} {kv}")
        else: E(f"buffer_load_dwordx4 v[{r}:{r+3}], v3, s[40:43], s44 offen offset:{i*1024} {kv}")
    st = {"issued": 0, "ops": [], "count": 0, "first": True}
    def wait_ops(k):
        if len(st["ops"]) > k:
            E(f"s_waitcnt vmcnt({k})")
            if st["first"]: stamp(5); st["first"] = False
            st["ops"] = st["ops"][len(st["ops"]) - k:]
    def wait_landed(k):
        if k - 1 in st["ops"]: wait_ops(len(st["ops"]) - 1 - st["ops"].index(k - 1))
    def paced_issue(n=None):
        ring = n is None
        if ring: n = st["issued"]
        wait_ops(sched(dsched, st["count"]) - 1)
        issue(n); st["ops"].append(n); st["count"] += 1
        if ring: st["issued"] += 1
    def p_item(vaddr, soff, imm=0):
        wait_ops(sched(dsched, st["count"]) - 1)
        E(f"buffer_load_dword v14, {vaddr}, s[56:59], {soff} offen offset:{imm} {pfl}")
        st["ops"].append("p"); st["count"] += 1
    if pf == 3:
        for k in range(4): p_item("v13", f"s{64+k}")
        srd(36, 6, sT, sT2)
        while st["count"] < sched(dsched, 0): paced_issue()
    else:
        for n in range(sched(dsched, 0)): paced_issue()
    E("s_branch L_s1")

    E.label("L_h0")
    WB = 128
    E("s_sub_u32 s35, s3, 4")
    E(f"s_and_b32 {sROT}, {sJ}, 7\ns_lshl_b32 {sROT}, {sROT}, 2" if rot else f"s_mov_b32 {sROT}, 0")
    E("v_and_b32 v2, 15, v0")
    E(f"v_lshl_add_u32 v3, v2, 1, {sROT}\nv_and_b32 v3, 31, v3\nv_lshl_add_u32 v3, v1, 5, v3")
    E("s_lshl_b32 s45, s35, 8\nv_lshl_add_u32 v4, v3, 1, s45")
    E("v_lshlrev_b32 v5, 4, v0")
    E("s_lshl_b32 s46, s35, 20\nv_lshlrev_b32 v6, 18, v1\nv_lshl_add_u32 v6, v2, 4, v6\nv_add_u32 v6, s46, v6")
    E(f"s_lshl_b32 s47, {sB}, 10\ns_lshl_b32 {sT}, {sH}, 8\ns_sub_u32 {sT2}, 0x400000, {sT}\ns_lshl_b32 s44, {sROT}, 13")
    E("s_waitcnt lgkmcnt(0)")
    srd(36, 4, None, 4096); srd(40, 10, sT, sT2)
    if "wq" in abl: E("s_mov_b32 s42, 0")
    E("buffer_load_dwordx4 v[28:31], v5, s[36:39], s47 offen")
    E("buffer_load_dword v7, v4, s[36:39], s47 offen")
    hq = {"ops": ["x", "x"], "issued": 0}
    def hwait(tok):
        if tok in hq["ops"]:
            k = len(hq["ops"]) - 1 - hq["ops"][::-1].index(tok)
            E(f"s_waitcnt vmcnt({len(hq['ops'])-k-1})"); hq["ops"] = hq["ops"][k+1:]
    def dhf(i):
        d = DH if i < 8 or DH2 is None else DH2
        if isinstance(d, float): return int(d) + ((i // 4) & 1)
        return d
    def wq_issue():
        i = hq["issued"]
        if i >= 32: return
        dh = dhf(i)
        if i >= dh: hwait(i - dh)
        E(f"buffer_load_dwordx4 v[{WB+4*i}:{WB+4*i+3}], v6, s[40:43], s44 offen {qfl}")
        if i < 31: E("s_add_u32 s44, s44, 0x2000\ns_and_b32 s44, s44, 0x3ffff")
        hq["ops"].append(i); hq["issued"] += 1
    for i in range(DH0 if pf == 3 else int(DH)): wq_issue()
    E(f"s_add_u32 s48, s26, {EP}\ns_addc_u32 s49, s27, 0\ns_load_dword {sTAG}, s[48:49], 0")
    E("s_branch L_h1")

    E.label("L_s1")
    srd(40, 8, sT, sT2)
    E("v_lshl_add_u32 v3, v0, 4, s35")
    masks(MB, T1)
    for i in range(16): E(f"v_mov_b32 v{BQ+i}, 0")
    E(f"v_mov_b32 {MX}, 0xff800000\nv_mov_b32 {LS}, 0")
    E("v_and_b32 v4, 3, v0\nv_lshl_add_u32 v4, v1, 2, v4\nv_lshlrev_b32 v4, 5, v4")
    E("v_and_b32 v5, 15, v0\nv_lshlrev_b32 v5, 4, v5\nv_lshl_add_u32 v5, v1, 3, v5")
    E(f"s_mul_i32 s46, s3, {OPS}\ns_add_u32 s46, s46, {OP}\nv_add_u32 v5, s46, v5")
    E(f"s_lshl_b32 s46, s3, 3\ns_add_u32 s46, s46, {ML}\nv_mov_b32 v6, s46")
    E(f"s_mov_b32 s47, {SCALE}\ns_mov_b32 s48, {LOG2E}")
    if pf == 3:
        while st["issued"] < pk: paced_issue()
        E("v_lshlrev_b32 v13, 4, v0")
        srd(56, 12, None, 0 if "wo" in abl else 0x400000)
        E(f"s_and_b32 s51, s50, 31\ns_lshl_b32 s64, {sH}, 5\ns_add_u32 s64, s64, s51\ns_lshl_b32 s64, s64, 12")
        for k in range(4): p_item("v13", "s64", 1024*k)
        srd(56, 20, None, 1792*1024)
        E(f"s_lshl_b32 s64, {sX}, 7\ns_add_u32 s64, s64, s50\ns_mul_i32 s64, s64, 1792")
        p_item("v13", "s64", 0); p_item("v13", "s64", 768)
        E("s_lshr_b32 s51, s50, 6\ns_cselect_b32 s66, s18, s16\ns_cselect_b32 s67, s19, s17")
        srd(56, 66, None, 0 if "f1" in abl else 512*3584)
        E(f"s_mul_i32 s64, {sX}, 7\ns_add_u32 s64, s64, 1\ns_sub_u32 s64, s64, s51\ns_lshr_b32 s64, s64, 1\ns_lshl_b32 s64, s64, 7")
        E(f"s_and_b32 s65, s50, 63\ns_mul_i32 s65, s65, {8*3584}\ns_add_u32 s64, s64, s65")
        E(f"s_xor_b32 s65, {sX}, s51\ns_and_b32 s65, s65, 1\ns_cselect_b32 s65, 0x400000, s64")
        E("v_lshrrev_b32 v13, 3, v0\nv_mul_u32_u24 v13, 0xe00, v13\nv_and_b32 v15, 7, v0\nv_lshl_add_u32 v13, v15, 4, v13")
        for k in range(3): p_item("v13", "s64", 128*k)
        p_item("v13", "s65", 384)
    if NLD:
        E(f"s_mul_i32 s49, s3, {NLD*1024}\ns_add_u32 s49, s49, {LDS_BYTES}\nv_lshl_add_u32 v7, v0, 4, s49")
        while st["issued"] < R - 4: paced_issue()
        for n in range(NLD): paced_issue(("L", n))
    while st["issued"] < R - early: paced_issue()
    stamp(1)
    E("s_barrier")
    stamp(2)
    for u in range(4):
        E(f"ds_read_b128 v[{SB+8*u}:{SB+8*u+3}], v4 offset:{QP+512*u}\nds_read_b128 v[{SB+8*u+4}:{SB+8*u+7}], v4 offset:{QP+512*u+16}")
    def maybe_issue():
        if st["issued"] < R: paced_issue()
    maybe_issue()
    E("s_waitcnt lgkmcnt(0)")
    for e in range(8): E(f"v_add_f32 v{SB+e}, v{SB+e}, v{SB+8+e}")
    for e in range(8): E(f"v_add_f32 v{SB+16+e}, v{SB+16+e}, v{SB+24+e}")
    for e in range(8): E(f"v_add_f32 v{SB+e}, v{SB+e}, v{SB+16+e}")
    for e in range(4): E(f"v_cvt_pk_bf16_f32 v{SB+8+e}, v{SB+2*e}, v{SB+2*e+1}")
    maybe_issue()
    for i in range(4):
        for e in range(4):
            E(f"v_mov_b32_dpp v{BQ+4*i+e}, v{SB+8+e} quad_perm:[0,1,2,3] row_mask:0xf bank_mask:{1<<i:#x}")
    def qk_post(t, d):
        return [f"v_mov_b32_dpp {T1}, v{d} quad_perm:[0,0,0,0] {DPPF}",
                f"v_mov_b32_dpp {T2}, v{d+2} quad_perm:[2,2,2,2] {DPPF}",
                None,
                f"v_add_f32_dpp {T1}, v{d+1}, {T1} quad_perm:[1,1,1,1] {DPPF}",
                f"v_add_f32_dpp {T2}, v{d+3}, {T2} quad_perm:[3,3,3,3] {DPPF}",
                f"v_add_f32 {T1}, {T1}, {T2}",
                None,
                f"v_cvt_pk_bf16_f32 {T1}, 0, {T1}",
                f"v_mul_f32 {T1}, s47, {T1}",
                None,
                f"v_cvt_pk_bf16_f32 v{SB+t}, 0, {T1}",
                f"v_max_f32 {MX}, {MX}, v{SB+t}"]
    def expo(t):
        E(f"v_fma_f32 {T1}, v{SB+t}, s48, {NM}\nv_exp_f32 {T1}, {T1}")
        E(f"v_add_f32 {LS}, {LS}, {T1}\nv_cvt_pk_bf16_f32 v{SB+t}, {T1}, {T1}")
    kq = {"n": 0, "prev": None}
    def kgroup(t, slots):
        d = DB[kq["n"] & 1]
        mf = []
        for i in range(4):
            r = RB + 4*(slots[i] % R)
            mf.append(f"v_mfma_f32_16x16x32_bf16 v[{d}:{d+3}], v[{r}:{r+3}], v[{BQ+4*i}:{BQ+4*i+3}], " + ("0" if i == 0 else f"v[{d}:{d+3}]"))
        E(mf.pop(0))
        if kq["prev"] is not None:
            for x in qk_post(*kq["prev"]): E(x if x else mf.pop(0))
        for x in mf: E(x)
        kq["prev"] = (t, d); kq["n"] += 1
    def transition():
        for x in qk_post(*kq["prev"]):
            if x: E(x)
        E(f"v_max_f32_dpp {MX}, {MX}, {MX} row_ror:4 {DPPF}\nv_max_f32_dpp {MX}, {MX}, {MX} row_ror:8 {DPPF}")
        xrow_allreduce("v_max_f32", MX, T1)
        E(f"v_mul_f32 {MX}, s48, {MX}\nv_sub_f32 {NM}, 0, {MX}")
        expo(0)
        stamp(3)
    def vload(n):
        k = n - NK
        t, i = k // 4, k % 4
        r = RB + 4*(n % R)
        m = masked_mfma(OA, f"v{SB+t}", 4*i, r, BQ + 4*i, MB, first=(k == 0))
        if k < 31: expo(k + 1)
        if k == 31:
            E(f"v_add_f32_dpp {LS}, {LS}, {LS} row_ror:4 {DPPF}\nv_add_f32_dpp {LS}, {LS}, {LS} row_ror:8 {DPPF}")
            xrow_allreduce("v_add_f32", LS, T1)
            E(f"v_min_u32 {MX}, -2, {MX}\nv_min_u32 {LS}, -2, {LS}")
            E(f"ds_write_b64 v6, v[10:11]")
        return m
    done = 0
    ldone = 0; lpend = None
    while done < NK or ldone < NLD or lpend:
        lag = st["issued"] - done
        if lpend and st.get("run", 0) >= 1:
            E("s_waitcnt lgkmcnt(0)")
            kgroup(*lpend); lpend = None; st["run"] = 0; st["lastl"] = True
        elif done < NK and not lpend and (lag > R - 1 or lag >= sched(dsched, st["count"]) + 4 and st.get("run", 0) >= (1 if st.get("lastl") else cu)):
            wait_landed(done + 4)
            kgroup(tensor_index(done) // 4, [done + i for i in range(4)]); done += 4; st["run"] = 0; st["lastl"] = False
            if ldone < NLD and st["issued"] + 12 <= done + R and not any(isinstance(o, tuple) for o in st["ops"]):
                sl = [st["issued"] + 4 + i for i in range(4)]
                for i in range(4):
                    r = RB + 4*(sl[i] % R)
                    E(f"ds_read_b128 v[{r}:{r+3}], v7 offset:{(ldone + i)*1024}")
                lpend = ((L0 + ldone) // 4, sl); ldone += 4
        else:
            assert done < NK or lpend, "LDS groups left over"
            paced_issue(); st["run"] = st.get("run", 0) + 1
    paced_issue()
    transition()
    while done < NL:
        m = vload(done)
        while st["issued"] < NL and st["issued"] - done <= sched(dsched, st["count"]) and st["issued"] - done <= R - 1:
            paced_issue()
        wait_landed(done + 1)
        E(m); done += 1
    E("s_mov_b32 exec_hi, 0")
    E(f"v_cvt_pk_bf16_f32 v8, v{OA}, v{OA+1}\nv_cvt_pk_bf16_f32 v9, v{OA+2}, v{OA+3}")
    E("ds_write_b64 v5, v[8:9]")
    E("s_waitcnt lgkmcnt(0)")
    stamp(4)
    E("s_barrier")
    E("s_lshl_b32 s45, s3, 8\ns_add_u32 s45, s45, s2\ns_cmp_lg_u32 s45, 0xff\ns_cbranch_scc1 L_sdone")
    E(f"s_mov_b32 exec_hi, -1\ns_add_u32 s50, s26, {EP}\ns_addc_u32 s51, s27, 0\ns_load_dword {sTAG}, s[50:51], 0")
    srd(52, 26, None, WS_BYTES)
    E(f"v_lshlrev_b32 v4, 12, v0\ns_mov_b32 {sSPIN}, 0x40000\ns_waitcnt lgkmcnt(0)\ns_add_u32 {sTAG}, {sTAG}, 1")
    for r in range(4): E(f"s_add_u32 s{64+r}, {sTAG}, {TAGMUL*r}\ns_mov_b32 s{68+r}, {r*64*REC}")
    E.fence()
    E.label("L_pe")
    for t in range(4): E(f"buffer_load_dwordx4 v[{16+4*t}:{19+4*t}], v4, s[52:55], s{68+t} offen offset:3072 {hs}")
    E("s_waitcnt vmcnt(0)")
    for i in range(16): E(f"v_xor_b32 v{16+i}, s{64+(i&3)}, v{16+i}")
    E("v_or_b32 v8, v16, v17")
    for i in range(2, 16, 2): E(f"v_or3_b32 v8, v8, v{16+i}, v{17+i}")
    E("v_and_b32 v8, 0xff, v8\nv_cmp_ne_u32 vcc, 0, v8\ns_nop 4")
    spin_tail("L_pe", 8)
    E(f"s_mov_b64 exec, 1\nv_mov_b32 v8, {sTAG}\ns_mov_b32 s45, {EP}\nbuffer_store_dword v8, off, s[52:55], s45 {hs}")
    E.fence()
    E.label("L_sdone")
    stamp_flush([0,1,2,3,4,5])
    E("s_endpgm")

    E.label("L_h1")
    MB = 12; AB = [16, 20]; AC = 24
    E(f"s_lshl_b32 {sP}, {sP}, 1\ns_add_u32 {sP}, {sP}, {sHALF}\ns_lshl_b32 {sP}, {sP}, 12")
    srd(52, 26, None, WS_BYTES)
    if cpf:
        E("s_getpc_b64 s[56:57]")
        E.label("L_pc")
        E(f"s_sub_u32 s56, s56, L_pc-{KN}\ns_subb_u32 s57, s57, 0\ns_and_b32 s57, s57, 0xffff")
        E(f"s_mov_b32 s58, L_end-{KN}\ns_mov_b32 s59, 0x20000")
        E(f"s_lshl_b32 s45, {sJ}, 2\ns_add_u32 s45, s45, s35\ns_lshl_b32 s45, s45, 8\nv_lshlrev_b32 v40, 2, v0")
        E("buffer_load_dword v41, v40, s[56:59], s45 offen")
        hq["ops"].append("c")
    def prefetch():
        E("s_cmp_ge_u32 s35, 2\ns_cbranch_scc1 L_pf23")
        E(f"s_mul_i32 s45, {sX}, 7\ns_add_u32 s45, s45, 1\ns_sub_u32 s45, s45, s35\ns_lshr_b32 s45, s45, 1\ns_lshl_b32 s45, s45, 7")
        E(f"s_mul_i32 s46, {sJ}, {16*3584}\ns_add_u32 s45, s45, s46")
        E("s_cmp_eq_u32 s35, 1\ns_cselect_b32 s64, s18, s16\ns_cselect_b32 s65, s19, s17")
        srd(56, 64, None, 512*3584)
        E("v_mul_u32_u24 v40, 0xe00, v2\nv_lshl_add_u32 v40, v1, 7, v40")
        E(f"s_xor_b32 s46, {sX}, s35\ns_and_b32 s46, s46, 1\ns_cselect_b32 exec_hi, 0xffff, -1")
        E(f"buffer_load_dword v42, v40, s[56:59], s45 offen {pfl}")
        E("s_mov_b32 exec_hi, -1")
        srd(56, 20, None, 1792*1024)
        E(f"s_lshl_b32 s45, {sX}, 5\ns_add_u32 s45, s45, {sJ}\ns_lshl_b32 s45, s45, 1\ns_add_u32 s45, s45, s35\ns_mul_i32 s45, s45, 3584")
        E("v_lshlrev_b32 v40, 7, v0\ns_mov_b64 exec, 0xfffffff")
        E(f"buffer_load_dword v43, v40, s[56:59], s45 offen {pfl}")
        E("s_mov_b64 exec, -1\ns_branch L_pfd")
        E.label("L_pf23")
        srd(56, 12, None, 0x400000)
        E(f"s_lshl_b32 s45, {sH}, 3\ns_and_b32 s46, {sJ}, 7\ns_add_u32 s45, s45, s46\ns_lshl_b32 s45, s45, 1\ns_add_u32 s45, s45, s35\ns_sub_u32 s45, s45, 2\ns_lshl_b32 s45, s45, 13")
        E("v_lshlrev_b32 v40, 7, v0\ns_mov_b32 exec_hi, 0")
        E(f"buffer_load_dword v42, v40, s[56:59], s45 offen {pfl}")
        E("s_mov_b32 exec_lo, 0\ns_mov_b32 exec_hi, -1")
        E(f"buffer_load_dword v43, v40, s[56:59], s45 offen {pfl}")
        E("s_mov_b32 exec_lo, -1")
        E.label("L_pfd")
        hq["ops"] += ["p", "p"]
    if pf == 1: prefetch()
    masks(MB, "v8")
    hwait("x")
    if pf == 2: prefetch()
    stamp(1)
    for i in range(int(DH)): wq_issue()
    for e in range(4): E(f"v_lshlrev_b32 v{32+2*e}, 16, v{28+e}\nv_and_b32 v{33+2*e}, 0xffff0000, v{28+e}")
    E("v_add_f32 v8, v32, v33\nv_add_f32 v9, v34, v35\nv_add_f32 v10, v36, v37\nv_add_f32 v11, v38, v39")
    E("v_add_f32 v8, v8, v9\nv_add_f32 v10, v10, v11\nv_add_f32 v8, v8, v10")
    row_allreduce("v_add_f32", "v8"); xrow_allreduce("v_add_f32", "v8", "v9")
    E("v_mul_f32 v8, 0x3b000000, v8")
    for e in range(8): E(f"v_sub_f32 v{32+e}, v{32+e}, v8")
    E("v_mul_f32 v9, v32, v32\nv_mul_f32 v10, v33, v33")
    for e in range(2, 8): E(f"v_fmac_f32 v{9+(e&1)}, v{32+e}, v{32+e}")
    E("v_add_f32 v9, v9, v10")
    row_allreduce("v_add_f32", "v9"); xrow_allreduce("v_add_f32", "v9", "v10")
    def ln_finish(mean, var):
        E(f"v_mul_f32 {var}, 0x3b000000, {var}\nv_cvt_pk_bf16_f32 {mean}, 0, {mean}\nv_cvt_pk_bf16_f32 {var}, 0, {var}")
        E(f"v_add_f32 {var}, {EPS:#x}, {var}\nv_cvt_pk_bf16_f32 {var}, 0, {var}\nv_sqrt_f32 {var}, {var}")
        E(f"v_cvt_pk_bf16_f32 {var}, 0, {var}\nv_rcp_f32 {var}, {var}")
    ln_finish("v8", "v9")
    E("v_lshlrev_b32 v10, 16, v7\nv_and_b32 v11, 0xffff0000, v7")
    for r in ("v10", "v11"):
        E(f"v_sub_f32 {r}, {r}, v8\nv_cvt_pk_bf16_f32 {r}, 0, {r}\nv_mul_f32 {r}, {r}, v9\nv_cvt_pk_bf16_f32 {r}, {r}, {r}")
    def project(pp, streaming):
        pend = None
        for i in range(32):
            m = masked_mfma(AC, pp[i & 1], i >> 1, WB+4*i, AB[i & 1], MB, first=(i == 0))
            if pend: E(pend)
            if streaming:
                while hq["issued"] < 32 and hq["issued"] <= i + dhf(hq["issued"]): wq_issue()
                hwait(i)
            pend = m
        E(pend)
    project(("v10", "v11"), True)
    E("v_lshlrev_b32 v8, 5, v2\nv_lshl_add_u32 v8, v1, 4, v8\ns_lshl_b32 s46, s35, 9\nv_add_u32 v8, s46, v8")
    E(f"v_and_b32 v9, 3, v0\nv_lshlrev_b32 v9, 3, v9\nv_add_u32 v9, {ML}, v9\nv_mov_b32 v10, -1\nv_mov_b32 v11, -1")
    E("s_mov_b32 exec_hi, 0")
    E(f"ds_write_b128 v8, v[{AC}:{AC+3}] offset:{QP}")
    E("ds_write_b64 v9, v[10:11]")
    E("s_mov_b32 exec_hi, -1")
    E("s_waitcnt lgkmcnt(0)")
    stamp(3)
    E("s_barrier")
    E(f"s_add_u32 {sTAG}, {sTAG}, 1\ns_mov_b32 {sMSK}, 0xffffff00\ns_mov_b32 {sSPIN}, 0x40000")
    E(f"s_lshl_b32 {sT}, {sH}, 17")
    srd(48, 12, sT, 0 if "wo" in abl else 0x20000)
    E(f"s_lshl_b32 s45, s35, 8\nv_lshlrev_b32 v37, 10, v1\nv_lshl_add_u32 v37, v2, 4, v37\nv_add_u32 v37, s45, v37")
    E(f"s_lshl_b32 {sROT}, s35, 12\ns_add_u32 {sROT}, {sROT}, {WSG}")
    E(f"v_bfe_u32 v3, v0, 2, 2\nv_lshlrev_b32 v3, 8, v3\nv_lshl_add_u32 v3, v1, 5, v3\nv_and_b32 v4, 3, v0\nv_lshl_add_u32 v3, v4, 3, v3\nv_add_u32 v3, {sROT}, v3")
    E(f"v_lshlrev_b32 v4, 2, v0\nv_mov_b32 v10, 0\nds_write_b32 v4, v10 offset:{OP+4*OPS}")
    def wo_conv(i):
        for a_ in range(2):
            r = WB + 8*(i >> 1) + 4*a_ + 2*(i & 1)
            E(f"ds_read_b64_tr_b16 v[{r}:{r+1}], v3 offset:{1024*(i % 4) + 128*a_}")
    def wo_loads(a, b, tab):
        conv = a
        for i in range(a, b):
            d = sched(tab, i)
            assert d <= 3
            if i - a >= d: E(f"s_waitcnt vmcnt({d-1}) lgkmcnt(0)")
            assert conv > i - 4
            E(f"s_add_u32 m0, {sROT}, {1024*(i % 4)}\ns_mov_b32 s63, {4096*i}")
            E(f"buffer_load_dwordx4 v37, s[48:51], s63 offen {wfl} lds")
            while conv <= i - d and i - a >= d: wo_conv(conv); conv += 1
        E("s_waitcnt vmcnt(0)")
        while conv < b: wo_conv(conv); conv += 1
        E("s_waitcnt lgkmcnt(0)")
    E("s_cmp_lg_u32 s35, 0\ns_cbranch_scc1 L_H123")
    E("v_lshlrev_b32 v6, 10, v1\nv_bfe_u32 v7, v0, 2, 2\nv_lshl_add_u32 v6, v7, 7, v6\nv_and_b32 v7, 3, v0\nv_lshl_add_u32 v6, v7, 3, v6")
    E("v_and_b32 v36, 1, v0\nv_lshlrev_b32 v36, 2, v36")
    for r in range(4): tag(f"v{32+r}", "v36", r)
    E("v_lshrrev_b32 v38, 3, v0\nv_and_b32 v39, 7, v0")
    FA = 96
    def tile_step(sidx, slot, areg, aoff):
        r = 56
        for tau in range(4):
            for t in range(2):
                E(f"ds_read_b64_tr_b16 v[{r+4*tau+2*t}:{r+4*tau+2*t+1}], v6 offset:{WT+4096*slot+512*t+32*tau}")
        E(f"ds_read_b128 v[{r+16}:{r+19}], {areg} offset:{aoff}")
        E("s_waitcnt lgkmcnt(0)")
        for tau in range(4):
            E(f"v_mfma_f32_16x16x32_bf16 v[{FA+4*tau}:{FA+4*tau+3}], v[{r+16}:{r+19}], v[{r+4*tau}:{r+4*tau+3}], " + ("0" if sidx == 0 else f"v[{FA+4*tau}:{FA+4*tau+3}]"))
        E("s_nop 3")
    def tile_select():
        for tau in range(1, 4):
            for r in range(4): E(f"v_mov_b32_dpp v{FA+r}, v{FA+4*tau+r} quad_perm:[0,1,2,3] row_mask:{1<<tau:#x} bank_mask:0xf")
    def dma(n, stride, nslot):
        E(f"s_mov_b32 s44, {n*8*stride}\ns_mov_b32 m0, {WT + 1024*(n % (4*nslot))}")
        E(f"buffer_load_dwordx4 v4, s[40:43], s44 offen {ffl} lds")
    E(f"s_cmp_ge_u32 {sJ}, {0 if 'f1' in abl else 7}\ns_cbranch_scc1 L_notF1")
    E(f"s_mul_i32 s45, {sX}, 7\ns_add_u32 s45, s45, {sJ}\ns_lshr_b32 s46, s45, 1\ns_and_b32 s45, s45, 1")
    E("s_cselect_b32 s56, s18, s16\ns_cselect_b32 s57, s19, s17")
    E(f"s_lshl_b32 {sT}, s46, 7\ns_sub_u32 {sT2}, {512*3584}, {sT}")
    srd(40, 56, sT, sT2)
    E(f"s_mul_i32 s45, s45, 28672\ns_lshl_b32 s46, s46, 10\ns_add_u32 s45, s45, s46\ns_add_u32 s45, s45, {GB}")
    E("v_lshlrev_b32 v28, 10, v1\nv_lshl_add_u32 v28, v2, 4, v28")
    for t in range(4): E(f"buffer_load_dwordx4 v[{40+4*t}:{43+4*t}], v28, s[36:39], 0 offen offset:{256*t}")
    E("v_mul_u32_u24 v4, 0xe00, v38\nv_lshl_add_u32 v4, v39, 4, v4")
    f1 = {"n": 0}
    def f1_issue():
        n = f1["n"]
        if n >= DF: E(f"s_waitcnt vmcnt({DF-1})")
        dma(n, 3584, 7); f1["n"] += 1
    for n in range(DF + 1): f1_issue()
    U = 128
    for e in range(16): E(f"v_lshlrev_b32 v{U+2*e}, 16, v{40+e}\nv_and_b32 v{U+2*e+1}, 0xffff0000, v{40+e}")
    for n in range(DF - 1): f1_issue()
    E(f"v_add_f32 v24, v{U}, v{U+1}\nv_add_f32 v25, v{U+2}, v{U+3}")
    for e in range(4, 32): E(f"v_add_f32 v{24+(e&1)}, v{24+(e&1)}, v{U+e}")
    E("v_add_f32 v24, v24, v25")
    row_allreduce("v_add_f32", "v24")
    E("v_mul_f32 v24, 0x3b000000, v24\nv_mov_b32 v25, 0\nv_mov_b32 v26, 0")
    for e in range(32): E(f"v_sub_f32 v27, v{U+e}, v24\nv_fmac_f32 v{25+(e&1)}, v27, v27")
    E("v_add_f32 v25, v25, v26")
    row_allreduce("v_add_f32", "v25")
    ln_finish("v24", "v25")
    for e in range(32): E(f"v_sub_f32 v{U+e}, v{U+e}, v24\nv_cvt_pk_bf16_f32 v{U+e}, 0, v{U+e}\nv_mul_f32 v{U+e}, v{U+e}, v25")
    for e in range(16): E(f"v_cvt_pk_bf16_f32 v{40+e}, v{U+2*e}, v{U+2*e+1}")
    for t in range(4): E(f"ds_write_b128 v28, v[{40+4*t}:{43+4*t}] offset:{XN+256*t}")
    E("v_lshlrev_b32 v7, 10, v7\nv_lshl_add_u32 v7, v1, 4, v7")
    for sidx in range(16):
        while f1["n"] < 64 and f1["n"] - DF < 4*sidx + 4: f1_issue()
        if f1["n"] == 64: E(f"s_waitcnt vmcnt({min(DF, 64 - 4*sidx - 4)})")
        assert f1["n"] <= 4*sidx + 28
        tile_step(sidx, sidx % 7, "v7", XN + 64*sidx)
    tile_select()
    for r in range(4): E(f"v_cvt_pk_bf16_f32 v{FA+r}, 0, v{FA+r}")
    for r in range(4): E(f"v_or_b32 v{FA+r}, v{FA+r}, v{32+r}")
    E(f"buffer_store_dwordx4 v[{FA}:{FA+3}], v5, s[52:55], s45 offen {hs}")
    stamp(4)
    wo_loads(0, 32, wof1)
    stamp(5)
    E("s_branch L_tail")
    E.label("L_notF1")
    E(f"s_lshr_b32 s45, {sJ}, 3\ns_cmp_eq_u32 s45, 1\ns_cbranch_scc1 L_F2")
    wo_loads(0, 32, wo0)
    stamp(5)
    E("s_branch L_tail")
    E.label("L_F2")
    E(f"s_and_b32 s46, {sJ}, 7\ns_mul_i32 {sT}, {sX}, {224*1024}\ns_lshl_b32 s45, s46, 7\ns_add_u32 {sT}, {sT}, s45\ns_sub_u32 {sT2}, {1792*1024}, {sT}")
    srd(40, 20, sT, sT2)
    E(f"s_lshl_b32 s46, s46, 3\ns_add_u32 s46, s46, {sX}\ns_lshl_b32 s46, s46, 10\ns_add_u32 s46, s46, {DBX}")
    E("v_lshlrev_b32 v4, 10, v38\nv_lshl_add_u32 v4, v39, 4, v4")
    for n in range(28):
        if n >= DF2: E(f"s_waitcnt vmcnt({DF2-1})")
        dma(n, 1024, 7)
    wo_loads(0, f2at, wof2)
    E(f"v_lshrrev_b32 v4, 5, v0\nv_mul_u32_u24 v4, 0x7000, v4\nv_and_b32 v28, 31, v0\nv_lshl_add_u32 v4, v28, 4, v4")
    E(f"s_mul_i32 s45, {sX}, {224*16}\ns_add_u32 s45, s45, {GB}")
    E.fence()
    E.label("L_pg")
    for i in range(7): E(f"buffer_load_dwordx4 v[{40+4*i}:{43+4*i}], v4, s[52:55], s45 offen offset:{512*i} {hs}")
    E("s_waitcnt vmcnt(0)")
    for i in range(28): E(f"v_xor_b32 v{40+i}, v{40+i}, v{32+(i&3)}")
    E("v_or_b32 v28, v40, v41")
    for i in range(2, 28, 2): E(f"v_or3_b32 v28, v28, v{40+i}, v{41+i}")
    E("v_and_b32 v28, 0xffff, v28\nv_cmp_ne_u32 vcc, 0, v28\ns_nop 4")
    if "f1" in abl: E("s_mov_b64 vcc, 0")
    spin_tail("L_pg", 32)
    for r in range(4): E(f"v_mov_b32 v{68+r}, v{64+r}")
    E("v_lshlrev_b32 v28, 1, v0")
    for i in range(4):
        for r in range(4): E(f"v_permlane32_swap_b32 v{40+8*i+r}, v{44+8*i+r}")
        for r in range(4): E(f"v_max_f32 v{40+8*i+r}, 0, v{40+8*i+r}")
        for r in range(4): E(f"v_mul_f32 v{40+8*i+r}, v{40+8*i+r}, v{44+8*i+r}")
        for r in range(4): E(f"v_cvt_pk_bf16_f32 v{40+8*i+r}, v{40+8*i+r}, v{40+8*i+r}")
        for r in range(4): E(f"ds_write_b16 v28, v{40+8*i+r} offset:{XN+512*r+128*i}")
    E("v_lshlrev_b32 v7, 9, v7\nv_lshl_add_u32 v7, v1, 4, v7")
    for sidx in range(7): tile_step(sidx, sidx, "v7", XN + 64*sidx)
    tile_select()
    for r in range(4): E(f"v_and_or_b32 v{FA+r}, v{FA+r}, {sMSK}, v{32+r}")
    E(f"buffer_store_dwordx4 v[{FA}:{FA+3}], v5, s[52:55], s46 offen {hs}")
    stamp(6)
    wo_loads(f2at, 32, wof2)
    stamp(5)
    E("s_branch L_tail")
    E.label("L_H123")
    wo_loads(0, mlat, wo123)
    E("s_cmp_eq_u32 s35, 2\ns_cbranch_scc1 L_H2")
    wo_loads(mlat, 32, wo123)
    stamp(5)
    E("s_cmp_lg_u32 s35, 1\ns_cbranch_scc1 L_tail")
    E("v_and_b32 v7, 7, v0\nv_lshrrev_b32 v36, 3, v0")
    E(f"s_lshl_b32 s45, {sX}, 7\ns_and_b32 s46, {sJ}, 7\ns_lshl_b32 s46, s46, 4\ns_add_u32 s46, s46, s45")
    E(f"s_lshr_b32 s47, {sJ}, 3")
    E("s_lshl_b32 s72, s47, 10\ns_add_u32 s72, s72, s46")
    E("v_lshlrev_b32 v33, 1, v7\nbuffer_load_ushort v34, v33, s[36:39], s72 offen")
    E("v_lshlrev_b32 v35, 12, v36\nv_lshl_add_u32 v35, v7, 2, v35\ns_lshl_b32 s73, s46, 1\nv_add_u32 v35, s73, v35")
    E("s_lshl_b32 s64, s47, 18")
    for t in range(1, 8): E(f"s_add_u32 s{64+t}, s{63+t}, 0x8000")
    if ypre:
        for t in range(8):
            E(f"buffer_load_dword v{40+t}, v35, s[52:55], s{64+t} offen {hs}")
            if t & 1: E("s_waitcnt vmcnt(0)")
    tag("v38", "v7")
    E("v_and_b32 v6, 1, v0\nv_lshl_add_u32 v6, v6, 2, s47")
    tag("v39", "v6")
    E("v_lshlrev_b32 v4, 10, v36\nv_lshl_add_u32 v4, v7, 4, v4")
    E(f"s_lshl_b32 s44, {sX}, 13\ns_and_b32 s45, {sJ}, 7\ns_lshl_b32 s45, s45, 7\ns_add_u32 s44, s44, s45\ns_lshl_b32 s45, s47, 2\ns_add_u32 s44, s44, s45\ns_add_u32 s44, s44, {DBX}")
    E.fence()
    E.label("L_pd")
    E(f"buffer_load_dword v40, v4, s[52:55], s44 offen {hs}\ns_waitcnt vmcnt(0)")
    E("v_xor_b32 v40, v40, v39\nv_and_b32 v28, 0xff, v40\nv_cmp_ne_u32 vcc, 0, v28\ns_nop 4")
    spin_tail("L_pd", 16)
    E(f"v_lshlrev_b32 v34, 16, v34\nv_add_f32_dpp v40, v40, v40 row_ror:8 {DPPF}")
    xrow_allreduce("v_add_f32", "v40", "v41")
    E(f"v_cvt_pk_bf16_f32 v40, 0, v40\nv_mul_f32 v41, 0xbfb8aa3b, v40\nv_exp_f32 v41, v41\nv_add_f32 v41, 1.0, v41")
    E("v_rcp_f32 v41, v41\nv_mul_f32 v41, v40, v41\nv_cvt_pk_bf16_f32 v32, 0, v41")
    stamp(4)
    E.fence()
    E("s_branch L_tail")
    E.label("L_H2")
    E("v_and_b32 v7, 7, v0")
    tag("v38", "v7")
    E("v_and_b32 v7, 31, v0\nv_lshlrev_b32 v7, 2, v7\nv_and_b32 v6, 1, v0\nv_cmp_eq_u32 s[64:65], 1, v6")
    E.fence()
    E.label("L_ml")
    E("ds_read_b64 v[28:29], v9\ns_waitcnt lgkmcnt(0)")
    E("v_max_u32 v30, v28, v29\nv_cmp_eq_u32 vcc, -1, v30\ns_nop 4")
    spin_tail("L_ml", 8)
    E(f"v_max_f32_dpp v30, v28, v28 quad_perm:[1,0,3,2] {DPPF}\nv_max_f32_dpp v30, v30, v30 quad_perm:[2,3,0,1] {DPPF}")
    E(f"v_and_b32 v30, {sMSK}, v30")
    E("v_sub_f32 v31, v28, v30\nv_exp_f32 v31, v31\nv_mul_f32 v31, v31, v29")
    E(f"v_add_f32_dpp v31, v31, v31 quad_perm:[1,0,3,2] {DPPF}\nv_add_f32_dpp v31, v31, v31 quad_perm:[2,3,0,1] {DPPF}")
    E(f"v_and_b32 v31, {sMSK}, v31")
    E("v_cndmask_b32 v36, v30, v31, s[64:65]\nv_or_b32 v36, v36, v38")
    E("s_mov_b32 exec_hi, 0")
    E(f"buffer_store_dword v36, v7, s[52:55], {sP} offen offset:3072 {hs}")
    E(f"s_mov_b64 exec, -1\ns_xor_b32 s45, {sP}, 0x1000")
    wo_loads(mlat, 32, wo123)
    stamp(5)
    E.fence()
    E.label("L_pm")
    E(f"buffer_load_dword v40, v7, s[52:55], s45 offen offset:3072 {hs}\ns_waitcnt vmcnt(0)")
    E("v_xor_b32 v40, v40, v38\nv_and_b32 v41, 0xff, v40\nv_cmp_ne_u32 vcc, 0, v41\ns_nop 4")
    if "noml" in abl: E("s_mov_b64 vcc, 0")
    spin_tail("L_pm", 8)
    E(f"v_mov_b32_dpp v36, v40 quad_perm:[0,0,0,0] {DPPF}\nv_mov_b32_dpp v39, v40 quad_perm:[1,1,1,1] {DPPF}")
    E("v_max_f32 v41, v30, v36\nv_sub_f32 v30, v30, v41\nv_sub_f32 v36, v36, v41\nv_sub_f32 v28, v28, v41")
    E("v_exp_f32 v30, v30\nv_exp_f32 v36, v36\nv_exp_f32 v28, v28")
    E("v_mul_f32 v31, v31, v30\nv_mul_f32 v39, v39, v36\nv_add_f32 v31, v31, v39\nv_rcp_f32 v31, v31\nv_mul_f32 v28, v28, v31")
    E(f"v_and_b32 v29, 3, v0\nv_lshlrev_b32 v29, 2, v29\nds_write_b32 v29, v28 offset:{FW}")
    E("s_waitcnt lgkmcnt(0)")
    stamp(6)
    E.fence()
    E.label("L_tail")
    AR = 64
    E(f"v_and_b32 v6, 3, v0\nv_mul_u32_u24 v6, {OPS}, v6\nv_mov_b32 v4, {4*OPS}\nv_bfe_u32 v7, v0, 2, 2\nv_cmp_eq_u32 vcc, v7, v1\nv_cndmask_b32 v3, v4, v6, vcc")
    E("v_and_b32 v7, 7, v0")
    tag("v38", "v7")
    E("v_mov_b32 v4, 0\ns_lshl_b32 s46, s35, 9\nv_lshl_add_u32 v8, v0, 2, s46")
    srd(40, 22, None, 4096)
    E("s_barrier")
    stamp(7)
    if stamps: E("s_waitcnt lgkmcnt(0)")
    pre = 8
    def aread(k): E(f"ds_read_b128 v[{AR+4*k}:{AR+4*k+3}], v3 offset:{OP+16*k}")
    for k in range(pre): aread(k)
    for k in range(16):
        if k + pre < 16: E(f"s_waitcnt lgkmcnt({pre-1})"); aread(k + pre)
        elif k + pre == 16: E(f"s_waitcnt lgkmcnt({pre-1})\nds_read_b128 v[28:31], v4 offset:{FW}")
        else: E(f"s_waitcnt lgkmcnt({16-k})")
        for a_ in range(2):
            E(f"v_mfma_f32_16x16x32_bf16 v[{16+4*a_}:{19+4*a_}], v[{AR+4*k}:{AR+4*k+3}], v[{WB+8*k+4*a_}:{WB+8*k+4*a_+3}], " + ("0" if k == 0 else f"v[{16+4*a_}:{19+4*a_}]"))
    E("s_waitcnt lgkmcnt(0)")
    for a_ in range(2):
        E(f"v_mul_f32 v{10+a_}, v28, v{16+4*a_}")
        for w in range(1, 4): E(f"v_fmac_f32 v{10+a_}, v{28+w}, v{16+4*a_+w}")
        E(f"v_and_or_b32 v{10+a_}, v{10+a_}, {sMSK}, v38")
        if "noy" not in abl: E(f"buffer_store_dword v{10+a_}, v8, s[52:55], {sP} offen offset:{256*a_} {ys}")
    stamp(8)
    E("s_cmp_lg_u32 s35, 1\ns_cbranch_scc1 L_done")
    if "nopoll" in abl:
        stamp(9)
        E("s_branch L_done")
    E.label("L_poll")
    for t in range(8): E(f"buffer_load_dword v{40+t}, v35, s[52:55], s{64+t} offen {hs}")
    for t in range(8):
        E(f"s_waitcnt vmcnt({7-t})\nv_xor_b32 v{40+t}, v{40+t}, v38")
    E("v_or3_b32 v28, v40, v41, v42\nv_or3_b32 v29, v43, v44, v45\nv_or3_b32 v28, v28, v46, v47\nv_or_b32 v28, v28, v29")
    E("v_and_b32 v28, 0xff, v28\nv_cmp_ne_u32 vcc, 0, v28")
    E("v_add_f32 v40, v40, v41\nv_add_f32 v42, v42, v43\nv_add_f32 v44, v44, v45\nv_add_f32 v46, v46, v47\nv_add_f32 v40, v40, v42")
    spin_tail("L_poll", psleep)
    E("v_add_f32 v44, v44, v46\nv_add_f32 v40, v40, v44")
    E(f"v_add_f32_dpp v40, v40, v40 row_ror:8 {DPPF}")
    xrow_allreduce("v_add_f32", "v40", "v41")
    E("v_cvt_pk_bf16_f32 v40, 0, v40\nv_mul_f32 v40, v40, v32\nv_cvt_pk_bf16_f32 v40, 0, v40\nv_add_f32 v40, v40, v34\nv_cvt_pk_bf16_f32 v40, v40, v40")
    E("s_mov_b64 exec, 0xff")
    E(f"buffer_store_short v40, v33, s[40:43], s72 offen {ofl}")
    stamp(9)
    E.fence()
    E.label("L_done")
    stamp_flush(list(range(10)))
    E.label("L_end")
    E("s_endpgm")
    E.raw(f""".section .rodata,"a"
.p2align 6
.amdhsa_kernel {KN}
  .amdhsa_next_free_vgpr 256
  .amdhsa_next_free_sgpr 102
  .amdhsa_accum_offset 256
  .amdhsa_group_segment_fixed_size 0
  .amdhsa_kernarg_size 96
  .amdhsa_user_sgpr_count 2
  .amdhsa_user_sgpr_kernarg_segment_ptr 1
  .amdhsa_system_sgpr_workgroup_id_x 1
.end_amdhsa_kernel""")
    return E.text()

if __name__ == "__main__":
    kw = eval("dict(" + (sys.argv[2] if len(sys.argv) > 2 else "") + ")")
    open(sys.argv[1], "w").write(gen(**kw))
```

```python
import sys
from emit import Emit
KN = "recurrent_scan__mha_block_cached__glu_gated_reglu__decode_kernel"
DPPF = "row_mask:0xf bank_mask:0xf"
QP, OP, ML, FW, XN, WT = 0, 2048, 4096, 4160, 4608, 8704
WSG = 8704 + 28672
LDS_BYTES = WSG + 16384
OPS = 272
REC = 4096
GB = 256 * REC
DBX = GB + 65536
EP = DBX + 65536
PG = EP + 4096
STAMP = 16 << 20
WS_BYTES = 32 << 20
LOG2E = 0x3fb8aa3b
SCALE = 0x3db504f3
EPS = 0x3727c5ac
TAGMUL = 37

STAMPS = [("S start", slice(0,4), 0), ("S first", slice(0,4), 5), ("ringfull", slice(0,4), 1), ("B1", slice(0,4), 2), ("Kdone", slice(0,4), 3), ("Vdone", slice(0,4), 4),
          ("H x", slice(4,8), 1), ("H q", slice(4,8), 3), ("F1", slice(4,5), 4), ("F2", slice(4,5), 6), ("H1 g", slice(5,6), 4), ("wo", slice(4,8), 5), ("fw", slice(6,7), 6),
          ("B2", slice(4,8), 7), ("ystore", slice(4,8), 8), ("out", slice(5,6), 9)]

def gen(dsched=((0,2),(4,5),(224,8)), R=44, DH=4, hmap=0, pk=0, DH0=0, cu=2, psleep=0, ypre=1, mlat=22, xsw=None, lmap=1, vtouch=0, cst=(16,196), cps=(), DD=8, jrel=(20,), gthr=4, wo0=((0,2),), wof1=((0,3),), wof2=((0,2),), wo123=((0,1),(16,2)), f2at=16, DF=6, DF2=3, rot=1, roto=0, DH2=3, pf=1, pfl='',
        kv="nt", wfl="", qfl="", ffl="", hbit=15, stamps=False, cpf=False, hs="sc1", ys="sc1", early=2, header="", abl=(), NLD=20, ofl=""):
    E = Emit()
    if xsw: dsched = tuple(dsched[:-1]) + ((min(xsw), dsched[-1][1]),)
    sX, sJ, sH, sB, sHALF, sP, sROT, sT, sT2, sSPIN, sTAG, sMSK = "s28","s29","s30","s31","s32","s33","s34","s60","s61","s62","s74","s75"
    def stamp(i):
        if stamps and (stamps is True or i in stamps): E(f"s_memrealtime s[{76+2*i}:{77+2*i}]")
    def stamp_flush(n):
        if not stamps: return
        E("s_waitcnt lgkmcnt(0)")
        E("s_getreg_b32 s63, hwreg(HW_REG_XCC_ID)")
        E("s_mov_b32 s56, s26\ns_and_b32 s57, s27, 0xffff")
        E(f"s_mov_b32 s58, {WS_BYTES}\ns_mov_b32 s59, 0x20000")
        E(f"s_lshl_b32 {sT}, s2, 3\ns_add_u32 {sT}, {sT}, s3\ns_lshl_b32 {sT}, {sT}, 6\ns_add_u32 {sT}, {sT}, {STAMP}")
        E("s_mov_b64 exec, 1")
        for i in range(12):
            E(f"v_mov_b32 v{4+i}, " + (f"s{76+2*i}" if i in n else "0"))
        E("v_mov_b32 v16, s63\nv_mov_b32 v17, 0\nv_mov_b32 v18, 0\nv_mov_b32 v19, 0")
        for i in range(4):
            E(f"buffer_store_dwordx4 v[{4+4*i}:{7+4*i}], off, s[56:59], {sT} offset:{16*i}")
    def srd(r, ptr, off=None, size=0):
        if off is None:
            E(f"s_mov_b32 s{r}, s{ptr}\ns_and_b32 s{r+1}, s{ptr+1}, 0xffff")
        else:
            E(f"s_add_u32 s{r}, s{ptr}, {off}\ns_addc_u32 s{r+1}, s{ptr+1}, 0\ns_and_b32 s{r+1}, s{r+1}, 0xffff")
        E(f"s_mov_b32 s{r+2}, {size}\ns_mov_b32 s{r+3}, 0x20000")
    def row_allreduce(op, v):
        for m in ("quad_perm:[1,0,3,2]", "quad_perm:[2,3,0,1]", "row_half_mirror", "row_mirror"):
            E(f"{op}_dpp {v}, {v}, {v} {m} {DPPF}")
    def xrow_allreduce(op, v, t):
        for sw in ("v_permlane16_swap_b32", "v_permlane32_swap_b32"):
            E(f"v_mov_b32 {t}, {v}\n{sw} {v}, {t}\n{op} {v}, {v}, {t}")
    def masks(base, t):
        E(f"v_and_b32 {t}, 1, v0\nv_lshlrev_b32 {t}, 4, {t}\nv_mov_b32 v{base+3}, 0xffff\nv_lshlrev_b32 {t}, {t}, v{base+3}")
        E(f"v_bfe_u32 v{base+3}, v0, 1, 3")
        for jx in range(4):
            E(f"v_cmp_eq_u32 vcc, {jx}, v{base+3}\nv_cndmask_b32 v{base+jx}, 0, {t}, vcc")
    def masked_mfma(acc, pp, bc, breg, abuf, mbase, first=False):
        for jx in range(4):
            E(f"v_and_b32_dpp v{abuf+jx}, {pp}, v{mbase+jx} row_newbcast:{bc} {DPPF}")
        return f"v_mfma_f32_16x16x32_bf16 v[{acc}:{acc+3}], v[{abuf}:{abuf+3}], v[{breg}:{breg+3}], " + ("0" if first else f"v[{acc}:{acc+3}]")
    def tag(dst, idx, add=0):
        E(f"v_mul_u32_u24 {dst}, {TAGMUL}, {idx}\nv_add_u32 {dst}, {sTAG}, {dst}")
        if add: E(f"v_add_u32 {dst}, {TAGMUL*add}, {dst}")
        E(f"v_and_b32 {dst}, 0xff, {dst}")
    def spin_tail(lbl, sleep):
        E(f"s_cbranch_vccz {lbl}_ok")
        if sleep: E(f"s_sleep {sleep}")
        E(f"s_sub_u32 {sSPIN}, {sSPIN}, 1\ns_cmp_gt_i32 {sSPIN}, 0\ns_cbranch_scc1 {lbl}")
        E.label(lbl + "_ok")
    def sched(tab, n):
        d = [d for (a, d) in tab if a <= n][-1]
        if isinstance(d, float):
            lo = int(d); return lo + (1 if (n % 16) < round((d - lo) * 16) else 0)
        return d

    if header: E.raw(header.rstrip("\n"))
    E.raw(f"; @launch grid=(256,1,1) block=(512,1,1) lds={LDS_BYTES + 4096*NLD}")
    E.raw('.amdgcn_target "amdgcn-amd-amdhsa--gfx950"\n.text')
    E.raw(f".globl {KN}\n.p2align 8\n.type {KN},@function\n{KN}:")
    E("s_load_dwordx16 s[4:19], s[0:1], 0")
    E("s_load_dwordx8 s[20:27], s[0:1], 64")
    stamp(0)
    E("s_cmp_ge_u32 s2, 0x100\ns_cbranch_scc1 L_end")
    E("v_lshrrev_b32 v1, 6, v0\nv_and_b32 v0, 63, v0\nv_readfirstlane_b32 s3, v1")
    E(f"s_and_b32 {sX}, s2, 7\ns_lshr_b32 {sJ}, s2, 3")
    if hmap == 0: E(f"s_and_b32 {sH}, {sJ}, 24\ns_add_u32 {sH}, {sH}, {sX}")
    else: E(f"s_lshr_b32 {sH}, {sJ}, 3\ns_mul_i32 {sH}, {sH}, 9\ns_xor_b32 {sH}, {sH}, {sX}")
    E(f"s_bfe_u32 {sB}, {sJ}, 0x20001\ns_and_b32 {sHALF}, {sJ}, 1")
    E(f"s_lshl_b32 {sP}, {sB}, 5\ns_add_u32 {sP}, {sP}, {sH}")
    E("v_lshrrev_b32 v1, 4, v0")
    E("s_cmp_ge_u32 s3, 4\ns_cbranch_scc1 L_h0")

    RB = 256 - 4*R; SB = RB - 32; BQ = SB - 16; DB = [BQ-8, BQ-4]; OA = BQ - 12; MB = BQ - 16
    assert MB >= 16
    T1, T2, MX, LS, NM = "v8", "v9", "v10", "v11", "v12"
    def k_setup():
        E(f"s_lshl_b32 {sT}, {sP}, 20\ns_lshl_b32 {sT2}, {sHALF}, {hbit}\ns_add_u32 {sT}, {sT}, {sT2}")
        E(f"s_sub_u32 {sT2}, 0x100000, {sT2}")
        E(f"s_lshl_b32 s35, s3, {8 if lmap else 12}")
        E("v_and_b32 v2, 3, v0\nv_lshlrev_b32 v2, 4, v2\nv_lshl_add_u32 v2, v1, 6, v2")
        E(f"v_bfe_u32 v3, v0, 2, 2\nv_lshl_add_u32 v2, v3, {12 if lmap else 8}, v2\nv_add_u32 v2, s35, v2")
    k_setup()
    if pf == 3:
        E(f"s_lshl2_add_u32 s50, {sJ}, s3")
        E("v_and_b32 v13, 15, v0\nv_lshlrev_b32 v13, 4, v13\nv_lshl_add_u32 v13, v1, 13, v13\ns_lshl_b32 s51, s50, 15")
        for k in range(4):
            if hmap == 0: E(f"s_add_u32 s{64+k}, {sX}, {8*k}")
            else: E(f"s_xor_b32 s{64+k}, {sX}, {9*k}")
            E(f"s_lshl_b32 s{64+k}, s{64+k}, 8\ns_add_u32 s{64+k}, s{64+k}, s51")
    E("s_waitcnt lgkmcnt(0)")
    if pf == 3: srd(56, 10, None, 0 if "wq" in abl else 0x400000)
    else: srd(36, 6, sT, sT2)
    cur = [None]
    def goff(t):
        o = t << 14
        return (o & ((1 << hbit) - 1)) | ((o >> hbit) << (hbit + 1))
    NL = 256 - NLD
    L0 = R - 4
    NK = 128 - NLD
    def tensor_index(n): return n if n < L0 else n + NLD
    def issue(n):
        lds = isinstance(n, tuple)
        a_ = L0 + n[1] if lds else tensor_index(n)
        t, i = (a_ % 128) // 4, a_ % 4
        if cur[0] != t:
            E(f"s_mov_b32 s44, {goff(t)}"); cur[0] = t
            if lds: E(f"s_add_u32 m0, s49, {n[1] * 1024}")
        if lds: E(f"buffer_load_dwordx4 v2, s[36:39], s44 offen offset:{i*1024} {kv} lds"); return
        r = RB + 4*(n % R)
        if a_ < 128: E(f"buffer_load_dwordx4 v[{r}:{r+3}], v2, s[36:39], s44 offen offset:{i*1024} {kv}")
        else: E(f"buffer_load_dwordx4 v[{r}:{r+3}], v3, s[40:43], s44 offen offset:{i*1024} {kv}")
    st = {"issued": 0, "ops": [], "count": 0, "first": True}
    def is_load(o): return not (isinstance(o, tuple) and o[0] in ("poll", "mark"))
    def keep(k):
        c = 0; v = 0
        for o in reversed(st["ops"]):
            if is_load(o):
                if c == k: break
                c += 1
            v += 1
        return v
    def wait_cnt(v):
        if len(st["ops"]) > v:
            E(f"s_waitcnt vmcnt({v})")
            if st["first"]: stamp(5); st["first"] = False
            st["ops"] = st["ops"][len(st["ops"]) - v:]
    def wait_ops(k): wait_cnt(keep(k))
    def wait_landed(k):
        if k - 1 in st["ops"]: wait_cnt(len(st["ops"]) - 1 - st["ops"].index(k - 1))
    def dyn(j): return sched(dsched, j) < DD and any(c["star"] - c["win"] + DD <= j < c["star"] - c["win"] + DD + c["G"]*c["win"] for c in cps)
    def depth(j): return DD if dyn(j) else sched(dsched, j)
    polls = []
    def paced_issue(n=None):
        ring = n is None
        if ring: n = st["issued"]
        j = st["count"]
        wait_ops(depth(j) - 1)
        for p in [p for p in polls if p not in st["ops"]]:
            polls.remove(p); _, reg, lim, thr = p
            E(f"v_cmp_eq_u32 vcc, v14, v{reg}\ns_bcnt1_i32_b32 s69, vcc_lo\ns_cmp_ge_u32 s69, {thr}\ns_cselect_b32 s69, {lim}, 0\ns_max_u32 s68, s68, s69")
        if dyn(j):
            E(f"s_cmpk_gt_u32 s68, {j}\ns_cbranch_scc1 L_d{j}\ns_waitcnt vmcnt({keep(sched(dsched, j) - 1)})")
            E.label(f"L_d{j}")
        if xsw and min(xsw) <= j < max(xsw):
            E(f"s_cmpk_le_u32 s51, {j}\ns_cbranch_scc1 L_x{j}\ns_waitcnt vmcnt({keep(sched(dsched, min(xsw) - 1) - 1)})")
            E.label(f"L_x{j}")
        issue(n); st["ops"].append(n); st["count"] += 1
        for ci, c in enumerate(cps):
            if j == c["ref"] and c.get("glob"):
                E(f"s_mov_b64 exec, 1\nbuffer_store_dword v15, off, s[52:55], s71 sc1\ns_mov_b64 exec, -1"); st["ops"].append(("mark", j))
            elif j == c["ref"]:
                E(f"s_mov_b64 exec, 1\nbuffer_store_dword v14, off, s[64:67], s70 offset:{128*ci}\ns_mov_b64 exec, -1"); st["ops"].append(("mark", j))
            if c["star"] - c["win"] <= j < c["star"] and (c["star"] - j) % 2 == 0:
                assert j >= 140
                p = ("poll", DB[0] + (j // 2) % 8, int(j + DD + c["G"]*(c["star"] - j)), c["thr"])
                E(f"buffer_load_dword v{p[1]}, v13, s[56:59], 0 offen offset:{128*ci} sc1"); st["ops"].append(p); polls.append(p)
        if ring: st["issued"] += 1
        if st["count"] == cst[0] + (14 if pf == 3 else 0): stamp(6)
        if st["count"] == cst[1] + (14 if pf == 3 else 0): stamp(7)
    def p_item(vaddr, soff, imm=0):
        wait_ops(sched(dsched, st["count"]) - 1)
        E(f"buffer_load_dword v14, {vaddr}, s[56:59], {soff} offen offset:{imm} {pfl}")
        st["ops"].append("p"); st["count"] += 1
    if pf == 3:
        for k in range(4): p_item("v13", f"s{64+k}")
        srd(36, 6, sT, sT2)
        while st["count"] < sched(dsched, 0): paced_issue()
    else:
        for n in range(sched(dsched, 0)): paced_issue()
    E("s_branch L_s1")

    E.label("L_h0")
    WB = 128
    E("s_sub_u32 s35, s3, 4")
    E(f"s_and_b32 {sROT}, {sJ}, 7\ns_lshl_b32 {sROT}, {sROT}, 2" if rot else f"s_mov_b32 {sROT}, 0")
    E("v_and_b32 v2, 15, v0")
    E(f"v_lshl_add_u32 v3, v2, 1, {sROT}\nv_and_b32 v3, 31, v3\nv_lshl_add_u32 v3, v1, 5, v3")
    E("s_lshl_b32 s45, s35, 8\nv_lshl_add_u32 v4, v3, 1, s45")
    E("v_lshlrev_b32 v5, 4, v0")
    E("s_lshl_b32 s46, s35, 20\nv_lshlrev_b32 v6, 18, v1\nv_lshl_add_u32 v6, v2, 4, v6\nv_add_u32 v6, s46, v6")
    E(f"s_lshl_b32 s47, {sB}, 10\ns_lshl_b32 {sT}, {sH}, 8\ns_sub_u32 {sT2}, 0x400000, {sT}\ns_lshl_b32 s44, {sROT}, 13")
    E("s_waitcnt lgkmcnt(0)")
    srd(36, 4, None, 4096); srd(40, 10, sT, sT2)
    if "wq" in abl: E("s_mov_b32 s42, 0")
    E("buffer_load_dwordx4 v[28:31], v5, s[36:39], s47 offen")
    E("buffer_load_dword v7, v4, s[36:39], s47 offen")
    hq = {"ops": ["x", "x"], "issued": 0}
    def hwait(tok):
        if tok in hq["ops"]:
            k = len(hq["ops"]) - 1 - hq["ops"][::-1].index(tok)
            E(f"s_waitcnt vmcnt({len(hq['ops'])-k-1})"); hq["ops"] = hq["ops"][k+1:]
    def dhf(i):
        d = DH if i < 8 or DH2 is None else DH2
        if isinstance(d, float): return int(d) + ((i // 4) & 1)
        return d
    def wq_issue():
        i = hq["issued"]
        if i >= 32: return
        dh = dhf(i)
        if i >= dh: hwait(i - dh)
        if "wqh" in abl and i >= 4:
            hq["issued"] += 1; return
        E(f"buffer_load_dwordx4 v[{WB+4*i}:{WB+4*i+3}], v6, s[40:43], s44 offen {qfl}")
        if i < 31: E("s_add_u32 s44, s44, 0x2000\ns_and_b32 s44, s44, 0x3ffff")
        hq["ops"].append(i); hq["issued"] += 1
    for i in range(DH0 if pf == 3 else int(DH)): wq_issue()
    E(f"s_add_u32 s48, s26, {EP}\ns_addc_u32 s49, s27, 0\ns_load_dword {sTAG}, s[48:49], 0")
    E("s_branch L_h1")

    E.label("L_s1")
    srd(40, 8, sT, sT2)
    if lmap: E("v_and_b32 v3, 15, v0\nv_lshl_add_u32 v3, v3, 4, s35\nv_lshl_add_u32 v3, v1, 12, v3")
    else: E("v_lshl_add_u32 v3, v0, 4, s35")
    if vtouch:
        E(f"buffer_load_dword v14, off, s[40:43], 0 {kv}"); st["ops"].append("t")
    masks(MB, T1)
    for i in range(16): E(f"v_mov_b32 v{BQ+i}, 0")
    E(f"v_mov_b32 {MX}, 0xff800000\nv_mov_b32 {LS}, 0")
    E("v_and_b32 v4, 3, v0\nv_lshl_add_u32 v4, v1, 2, v4\nv_lshlrev_b32 v4, 5, v4")
    E("v_and_b32 v5, 15, v0\nv_lshlrev_b32 v5, 4, v5\nv_lshl_add_u32 v5, v1, 3, v5")
    E(f"s_mul_i32 s46, s3, {OPS}\ns_add_u32 s46, s46, {OP}\nv_add_u32 v5, s46, v5")
    E(f"s_lshl_b32 s46, s3, 3\ns_add_u32 s46, s46, {ML}\nv_mov_b32 v6, s46")
    E(f"s_mov_b32 s47, {SCALE}\ns_mov_b32 s48, {LOG2E}")
    if pf == 3:
        while st["issued"] < pk: paced_issue()
        E("v_lshlrev_b32 v13, 4, v0")
        srd(56, 12, None, 0 if "wo" in abl else 0x400000)
        E(f"s_and_b32 s51, s50, 31\ns_lshl_b32 s64, {sH}, 5\ns_add_u32 s64, s64, s51\ns_lshl_b32 s64, s64, 12")
        for k in range(4): p_item("v13", "s64", 1024*k)
        srd(56, 20, None, 1792*1024)
        E(f"s_lshl_b32 s64, {sX}, 7\ns_add_u32 s64, s64, s50\ns_mul_i32 s64, s64, 1792")
        p_item("v13", "s64", 0); p_item("v13", "s64", 768)
        E("s_lshr_b32 s51, s50, 6\ns_cselect_b32 s66, s18, s16\ns_cselect_b32 s67, s19, s17")
        srd(56, 66, None, 0 if "f1" in abl else 512*3584)
        E(f"s_mul_i32 s64, {sX}, 7\ns_add_u32 s64, s64, 1\ns_sub_u32 s64, s64, s51\ns_lshr_b32 s64, s64, 1\ns_lshl_b32 s64, s64, 7")
        E(f"s_and_b32 s65, s50, 63\ns_mul_i32 s65, s65, {8*3584}\ns_add_u32 s64, s64, s65")
        E(f"s_xor_b32 s65, {sX}, s51\ns_and_b32 s65, s65, 1\ns_cselect_b32 s65, 0x400000, s64")
        E("v_lshrrev_b32 v13, 3, v0\nv_mul_u32_u24 v13, 0xe00, v13\nv_and_b32 v15, 7, v0\nv_lshl_add_u32 v13, v15, 4, v13")
        for k in range(3): p_item("v13", "s64", 128*k)
        p_item("v13", "s65", 384)
    if xsw:
        lo = sum(v << (8*k) for k, v in enumerate(xsw[:4])); hi = sum(v << (8*k) for k, v in enumerate(xsw[4:]))
        E(f"s_getreg_b32 s51, hwreg(HW_REG_XCC_ID, 0, 3)\ns_lshl_b32 s51, s51, 3\ns_mov_b32 s64, {lo:#x}\ns_mov_b32 s65, {hi:#x}")
        E("s_lshr_b64 s[64:65], s[64:65], s51\ns_and_b32 s51, s64, 0xff")
    E(f"s_add_u32 s72, s26, {EP}\ns_addc_u32 s73, s27, 0\ns_load_dword {sTAG}, s[72:73], 0")
    if NLD:
        E(f"s_mul_i32 s49, s3, {NLD*1024}\ns_add_u32 s49, s49, {LDS_BYTES}\nv_lshl_add_u32 v7, v0, 4, s49")
        while st["issued"] < R - 4: paced_issue()
        for n in range(NLD): paced_issue(("L", n))
    while st["issued"] < R - early: paced_issue()
    stamp(1)
    E("s_barrier")
    stamp(2)
    for u in range(4):
        E(f"ds_read_b128 v[{SB+8*u}:{SB+8*u+3}], v4 offset:{QP+512*u}\nds_read_b128 v[{SB+8*u+4}:{SB+8*u+7}], v4 offset:{QP+512*u+16}")
    def maybe_issue():
        if st["issued"] < R: paced_issue()
    maybe_issue()
    E("s_waitcnt lgkmcnt(0)")
    for e in range(8): E(f"v_add_f32 v{SB+e}, v{SB+e}, v{SB+8+e}")
    for e in range(8): E(f"v_add_f32 v{SB+16+e}, v{SB+16+e}, v{SB+24+e}")
    for e in range(8): E(f"v_add_f32 v{SB+e}, v{SB+e}, v{SB+16+e}")
    for e in range(4): E(f"v_cvt_pk_bf16_f32 v{SB+8+e}, v{SB+2*e}, v{SB+2*e+1}")
    maybe_issue()
    for i in range(4):
        for e in range(4):
            E(f"v_mov_b32_dpp v{BQ+4*i+e}, v{SB+8+e} quad_perm:[0,1,2,3] row_mask:0xf bank_mask:{1<<i:#x}")
    def qk_post(t, d):
        return [f"v_mov_b32_dpp {T1}, v{d} quad_perm:[0,0,0,0] {DPPF}",
                f"v_mov_b32_dpp {T2}, v{d+2} quad_perm:[2,2,2,2] {DPPF}",
                None,
                f"v_add_f32_dpp {T1}, v{d+1}, {T1} quad_perm:[1,1,1,1] {DPPF}",
                f"v_add_f32_dpp {T2}, v{d+3}, {T2} quad_perm:[3,3,3,3] {DPPF}",
                f"v_add_f32 {T1}, {T1}, {T2}",
                None,
                f"v_cvt_pk_bf16_f32 {T1}, 0, {T1}",
                f"v_mul_f32 {T1}, s47, {T1}",
                None,
                f"v_cvt_pk_bf16_f32 v{SB+t}, 0, {T1}",
                f"v_max_f32 {MX}, {MX}, v{SB+t}"]
    def expo(t):
        E(f"v_sub_f32 {T1}, v{SB+t}, {MX}\nv_mul_f32 {T1}, s48, {T1}\nv_exp_f32 {T1}, {T1}")
        E(f"v_add_f32 {LS}, {LS}, {T1}\nv_cvt_pk_bf16_f32 v{SB+t}, {T1}, {T1}")
    kq = {"n": 0, "prev": None}
    def kgroup(t, slots):
        d = DB[kq["n"] & 1]
        if "nocomp" in abl:
            kq["prev"] = (t, d); return
        mf = []
        for i in range(4):
            r = RB + 4*(slots[i] % R)
            mf.append(f"v_mfma_f32_16x16x32_bf16 v[{d}:{d+3}], v[{r}:{r+3}], v[{BQ+4*i}:{BQ+4*i+3}], " + ("0" if i == 0 else f"v[{d}:{d+3}]"))
        E(mf.pop(0))
        if kq["prev"] is not None:
            for x in qk_post(*kq["prev"]): E(x if x else mf.pop(0))
        for x in mf: E(x)
        kq["prev"] = (t, d); kq["n"] += 1
    def transition():
        for x in qk_post(*kq["prev"]):
            if x: E(x)
        E(f"v_max_f32_dpp {MX}, {MX}, {MX} row_ror:4 {DPPF}\nv_max_f32_dpp {MX}, {MX}, {MX} row_ror:8 {DPPF}")
        xrow_allreduce("v_max_f32", MX, T1)
        expo(0)
        stamp(3)
    def vload(n):
        k = n - NK
        t, i = k // 4, k % 4
        r = RB + 4*(n % R)
        if "nocomp" in abl: m = "s_nop 0"
        else: m = masked_mfma(OA, f"v{SB+t}", 4*i, r, BQ + 4*i, MB, first=(k == 0))
        if k < 31 and "nocomp" not in abl: expo(k + 1)
        if k == 31:
            E(f"v_add_f32_dpp {LS}, {LS}, {LS} row_ror:4 {DPPF}\nv_add_f32_dpp {LS}, {LS}, {LS} row_ror:8 {DPPF}")
            xrow_allreduce("v_add_f32", LS, T1)
            E(f"v_min_u32 {MX}, -2, {MX}\nv_min_u32 {LS}, -2, {LS}")
            E(f"ds_write_b64 v6, v[10:11]")
        return m
    done = 0
    ldone = 0; lpend = None
    while done < NK or ldone < NLD or lpend:
        lag = st["issued"] - done
        if lpend and st.get("run", 0) >= 1:
            E("s_waitcnt lgkmcnt(0)")
            kgroup(*lpend); lpend = None; st["run"] = 0; st["lastl"] = True
        elif done < NK and not lpend and (lag > R - 1 or lag >= sched(dsched, st["count"]) + 4 and st.get("run", 0) >= (1 if st.get("lastl") else cu)):
            wait_landed(done + 4)
            kgroup(tensor_index(done) // 4, [done + i for i in range(4)]); done += 4; st["run"] = 0; st["lastl"] = False
            if ldone < NLD and st["issued"] + 12 <= done + R and not any(isinstance(o, tuple) for o in st["ops"]):
                sl = [st["issued"] + 4 + i for i in range(4)]
                for i in range(4):
                    r = RB + 4*(sl[i] % R)
                    E(f"ds_read_b128 v[{r}:{r+3}], v7 offset:{(ldone + i)*1024}")
                lpend = ((L0 + ldone) // 4, sl); ldone += 4
        else:
            assert done < NK or lpend, "LDS groups left over"
            paced_issue(); st["run"] = st.get("run", 0) + 1
    paced_issue()
    transition()
    E(f"s_add_u32 {sTAG}, {sTAG}, 1")
    if cps:
        E(f"s_lshl_b32 s69, {sX}, 12\ns_add_u32 s69, s69, {PG}")
        srd(56, 26, "s69", 4096)
        E("s_mov_b32 s64, s56\ns_mov_b32 s65, s57\ns_mov_b32 s67, 0x20000\ns_cmp_eq_u32 s3, 1\ns_cselect_b32 s66, 4096, 0")
        E(f"s_lshl_b32 s70, {sJ}, 2\ns_mov_b32 s68, 0\nv_mov_b32 v14, {sTAG}\nv_and_b32 v13, 31, v0\nv_lshlrev_b32 v13, 2, v13")
        if any(c.get("glob") for c in cps):
            srd(52, 24, None, 0)
            E(f"s_lshl2_add_u32 s69, {sJ}, s3\ns_cmp_eq_u32 s69, {4*jrel[0]+1}\ns_cselect_b32 s54, 256, 0\ns_lshl_b32 s71, {sX}, 2\nv_mov_b32 v15, 1")
    while done < NL:
        m = vload(done)
        while st["issued"] < NL and st["issued"] - done <= depth(st["count"]) and st["issued"] - done <= R - 1:
            paced_issue()
        wait_landed(done + 1)
        E(m); done += 1
    E("s_mov_b32 exec_hi, 0")
    E(f"v_cvt_pk_bf16_f32 v8, v{OA}, v{OA+1}\nv_cvt_pk_bf16_f32 v9, v{OA+2}, v{OA+3}")
    E("ds_write_b64 v5, v[8:9]")
    E("s_waitcnt lgkmcnt(0)")
    stamp(4)
    E("s_barrier")
    E("s_lshl_b32 s45, s3, 8\ns_add_u32 s45, s45, s2\ns_cmp_lg_u32 s45, 0xff\ns_cbranch_scc1 L_sdone")
    E("s_mov_b32 exec_hi, -1")
    srd(52, 26, None, WS_BYTES)
    E(f"v_lshlrev_b32 v4, 12, v0\ns_mov_b32 {sSPIN}, 0x40000")
    for r in range(4): E(f"s_add_u32 s{64+r}, {sTAG}, {TAGMUL*r}\ns_mov_b32 s{68+r}, {r*64*REC}")
    E.fence()
    E.label("L_pe")
    for t in range(4): E(f"buffer_load_dwordx4 v[{16+4*t}:{19+4*t}], v4, s[52:55], s{68+t} offen offset:3072 {hs}")
    E("s_waitcnt vmcnt(0)")
    for i in range(16): E(f"v_xor_b32 v{16+i}, s{64+(i&3)}, v{16+i}")
    E("v_or_b32 v8, v16, v17")
    for i in range(2, 16, 2): E(f"v_or3_b32 v8, v8, v{16+i}, v{17+i}")
    E("v_and_b32 v8, 0xff, v8\nv_cmp_ne_u32 vcc, 0, v8\ns_nop 4")
    spin_tail("L_pe", 8)
    E(f"s_mov_b64 exec, 1\nv_mov_b32 v8, {sTAG}\ns_mov_b32 s45, {EP}\nbuffer_store_dword v8, off, s[52:55], s45 {hs}")
    E.fence()
    E.label("L_sdone")
    stamp_flush([0,1,2,3,4,5,6,7])
    E("s_endpgm")

    E.label("L_h1")
    MB = 12; AB = [16, 20]; AC = 24
    E(f"s_lshl_b32 {sP}, {sP}, 1\ns_add_u32 {sP}, {sP}, {sHALF}\ns_lshl_b32 {sP}, {sP}, 12")
    srd(52, 26, None, WS_BYTES)
    if cpf:
        E("s_getpc_b64 s[56:57]")
        E.label("L_pc")
        E(f"s_sub_u32 s56, s56, L_pc-{KN}\ns_subb_u32 s57, s57, 0\ns_and_b32 s57, s57, 0xffff")
        E(f"s_mov_b32 s58, L_end-{KN}\ns_mov_b32 s59, 0x20000")
        E(f"s_lshl_b32 s45, {sJ}, 2\ns_add_u32 s45, s45, s35\ns_lshl_b32 s45, s45, 8\nv_lshlrev_b32 v40, 2, v0")
        E("buffer_load_dword v41, v40, s[56:59], s45 offen")
        hq["ops"].append("c")
    def prefetch():
        E("s_cmp_ge_u32 s35, 2\ns_cbranch_scc1 L_pf23")
        E(f"s_mul_i32 s45, {sX}, 7\ns_add_u32 s45, s45, 1\ns_sub_u32 s45, s45, s35\ns_lshr_b32 s45, s45, 1\ns_lshl_b32 s45, s45, 7")
        E(f"s_mul_i32 s46, {sJ}, {16*3584}\ns_add_u32 s45, s45, s46")
        E("s_cmp_eq_u32 s35, 1\ns_cselect_b32 s64, s18, s16\ns_cselect_b32 s65, s19, s17")
        srd(56, 64, None, 512*3584)
        E("v_mul_u32_u24 v40, 0xe00, v2\nv_lshl_add_u32 v40, v1, 7, v40")
        E(f"s_xor_b32 s46, {sX}, s35\ns_and_b32 s46, s46, 1\ns_cselect_b32 exec_hi, 0xffff, -1")
        E(f"buffer_load_dword v42, v40, s[56:59], s45 offen {pfl}")
        E("s_mov_b32 exec_hi, -1")
        srd(56, 20, None, 1792*1024)
        E(f"s_lshl_b32 s45, {sX}, 5\ns_add_u32 s45, s45, {sJ}\ns_lshl_b32 s45, s45, 1\ns_add_u32 s45, s45, s35\ns_mul_i32 s45, s45, 3584")
        E("v_lshlrev_b32 v40, 7, v0\ns_mov_b64 exec, 0xfffffff")
        E(f"buffer_load_dword v43, v40, s[56:59], s45 offen {pfl}")
        E("s_mov_b64 exec, -1\ns_branch L_pfd")
        E.label("L_pf23")
        srd(56, 12, None, 0x400000)
        E(f"s_lshl_b32 s45, {sH}, 3\ns_and_b32 s46, {sJ}, 7\ns_add_u32 s45, s45, s46\ns_lshl_b32 s45, s45, 1\ns_add_u32 s45, s45, s35\ns_sub_u32 s45, s45, 2\ns_lshl_b32 s45, s45, 13")
        E("v_lshlrev_b32 v40, 7, v0\ns_mov_b32 exec_hi, 0")
        E(f"buffer_load_dword v42, v40, s[56:59], s45 offen {pfl}")
        E("s_mov_b32 exec_lo, 0\ns_mov_b32 exec_hi, -1")
        E(f"buffer_load_dword v43, v40, s[56:59], s45 offen {pfl}")
        E("s_mov_b32 exec_lo, -1")
        E.label("L_pfd")
        hq["ops"] += ["p", "p"]
    if pf == 1: prefetch()
    masks(MB, "v8")
    hwait("x")
    if pf == 2: prefetch()
    stamp(1)
    for i in range(int(DH)): wq_issue()
    for e in range(4): E(f"v_lshlrev_b32 v{32+2*e}, 16, v{28+e}\nv_and_b32 v{33+2*e}, 0xffff0000, v{28+e}")
    E("v_add_f32 v8, v32, v33\nv_add_f32 v9, v34, v35\nv_add_f32 v10, v36, v37\nv_add_f32 v11, v38, v39")
    E("v_add_f32 v8, v8, v9\nv_add_f32 v10, v10, v11\nv_add_f32 v8, v8, v10")
    row_allreduce("v_add_f32", "v8"); xrow_allreduce("v_add_f32", "v8", "v9")
    E("v_mul_f32 v8, 0x3b000000, v8")
    for e in range(8): E(f"v_sub_f32 v{32+e}, v{32+e}, v8")
    E("v_mul_f32 v9, v32, v32\nv_mul_f32 v10, v33, v33")
    for e in range(2, 8): E(f"v_fmac_f32 v{9+(e&1)}, v{32+e}, v{32+e}")
    E("v_add_f32 v9, v9, v10")
    row_allreduce("v_add_f32", "v9"); xrow_allreduce("v_add_f32", "v9", "v10")
    def ln_finish(mean, var):
        E(f"v_mul_f32 {var}, 0x3b000000, {var}\nv_cvt_pk_bf16_f32 {mean}, 0, {mean}\nv_cvt_pk_bf16_f32 {var}, 0, {var}")
        E(f"v_add_f32 {var}, {EPS:#x}, {var}\nv_cvt_pk_bf16_f32 {var}, 0, {var}\nv_sqrt_f32 {var}, {var}")
        E(f"v_cvt_pk_bf16_f32 {var}, 0, {var}\nv_rcp_f32 {var}, {var}")
    ln_finish("v8", "v9")
    E("v_lshlrev_b32 v10, 16, v7\nv_and_b32 v11, 0xffff0000, v7")
    for r in ("v10", "v11"):
        E(f"v_sub_f32 {r}, {r}, v8\nv_cvt_pk_bf16_f32 {r}, 0, {r}\nv_mul_f32 {r}, {r}, v9\nv_cvt_pk_bf16_f32 {r}, {r}, {r}")
    def project(pp, streaming):
        pend = None
        for i in range(32):
            m = masked_mfma(AC, pp[i & 1], i >> 1, WB+4*i, AB[i & 1], MB, first=(i == 0))
            if pend: E(pend)
            if streaming:
                while hq["issued"] < 32 and hq["issued"] <= i + dhf(hq["issued"]): wq_issue()
                hwait(i)
            pend = m
        E(pend)
    project(("v10", "v11"), True)
    E("v_lshlrev_b32 v8, 5, v2\nv_lshl_add_u32 v8, v1, 4, v8\ns_lshl_b32 s46, s35, 9\nv_add_u32 v8, s46, v8")
    E(f"v_and_b32 v9, 3, v0\nv_lshlrev_b32 v9, 3, v9\nv_add_u32 v9, {ML}, v9\nv_mov_b32 v10, -1\nv_mov_b32 v11, -1")
    E("s_mov_b32 exec_hi, 0")
    E(f"ds_write_b128 v8, v[{AC}:{AC+3}] offset:{QP}")
    E("ds_write_b64 v9, v[10:11]")
    E("s_mov_b32 exec_hi, -1")
    E("s_waitcnt lgkmcnt(0)")
    stamp(3)
    E("s_barrier")
    E(f"s_add_u32 {sTAG}, {sTAG}, 1\ns_mov_b32 {sMSK}, 0xffffff00\ns_mov_b32 {sSPIN}, 0x40000")
    E(f"s_lshl_b32 {sT}, {sH}, 17")
    srd(48, 12, sT, 0 if "wo" in abl else 0x20000)
    E(f"s_lshl_b32 s45, s35, 8\nv_lshlrev_b32 v37, 10, v1\nv_lshl_add_u32 v37, v2, 4, v37\nv_add_u32 v37, s45, v37")
    E(f"s_lshl_b32 {sROT}, s35, 12\ns_add_u32 {sROT}, {sROT}, {WSG}")
    E(f"v_bfe_u32 v3, v0, 2, 2\nv_lshlrev_b32 v3, 8, v3\nv_lshl_add_u32 v3, v1, 5, v3\nv_and_b32 v4, 3, v0\nv_lshl_add_u32 v3, v4, 3, v3\nv_add_u32 v3, {sROT}, v3")
    E(f"v_lshlrev_b32 v4, 2, v0\nv_mov_b32 v10, 0\nds_write_b32 v4, v10 offset:{OP+4*OPS}")
    def wo_conv(i):
        for a_ in range(2):
            r = WB + 8*(i >> 1) + 4*a_ + 2*(i & 1)
            E(f"ds_read_b64_tr_b16 v[{r}:{r+1}], v3 offset:{1024*(i % 4) + 128*a_}")
    def wo_loads(a, b, tab):
        if "woh" in abl:
            for i in range(a, b): E(f"s_sleep {26 // sched(tab, i)}")
            E("s_waitcnt vmcnt(0)"); return
        conv = a
        for i in range(a, b):
            d = sched(tab, i)
            assert d <= 3
            if i - a >= d: E(f"s_waitcnt vmcnt({d-1}) lgkmcnt(0)")
            assert conv > i - 4
            E(f"s_add_u32 m0, {sROT}, {1024*(i % 4)}\ns_mov_b32 s63, {4096*i}")
            E(f"buffer_load_dwordx4 v37, s[48:51], s63 offen {wfl} lds")
            while conv <= i - d and i - a >= d: wo_conv(conv); conv += 1
        E("s_waitcnt vmcnt(0)")
        while conv < b: wo_conv(conv); conv += 1
        E("s_waitcnt lgkmcnt(0)")
    E("s_cmp_lg_u32 s35, 0\ns_cbranch_scc1 L_H123")
    E("v_lshlrev_b32 v6, 10, v1\nv_bfe_u32 v7, v0, 2, 2\nv_lshl_add_u32 v6, v7, 7, v6\nv_and_b32 v7, 3, v0\nv_lshl_add_u32 v6, v7, 3, v6")
    E("v_and_b32 v36, 1, v0\nv_lshlrev_b32 v36, 2, v36")
    for r in range(4): tag(f"v{32+r}", "v36", r)
    E("v_lshrrev_b32 v38, 3, v0\nv_and_b32 v39, 7, v0")
    FA = 96
    def tile_step(sidx, slot, areg, aoff):
        r = 56
        for tau in range(4):
            for t in range(2):
                E(f"ds_read_b64_tr_b16 v[{r+4*tau+2*t}:{r+4*tau+2*t+1}], v6 offset:{WT+4096*slot+512*t+32*tau}")
        E(f"ds_read_b128 v[{r+16}:{r+19}], {areg} offset:{aoff}")
        E("s_waitcnt lgkmcnt(0)")
        for tau in range(4):
            E(f"v_mfma_f32_16x16x32_bf16 v[{FA+4*tau}:{FA+4*tau+3}], v[{r+16}:{r+19}], v[{r+4*tau}:{r+4*tau+3}], " + ("0" if sidx == 0 else f"v[{FA+4*tau}:{FA+4*tau+3}]"))
        E("s_nop 3")
    def tile_select():
        for tau in range(1, 4):
            for r in range(4): E(f"v_mov_b32_dpp v{FA+r}, v{FA+4*tau+r} quad_perm:[0,1,2,3] row_mask:{1<<tau:#x} bank_mask:0xf")
    def dma(n, stride, nslot):
        E(f"s_mov_b32 s44, {n*8*stride}\ns_mov_b32 m0, {WT + 1024*(n % (4*nslot))}")
        E(f"buffer_load_dwordx4 v4, s[40:43], s44 offen {ffl} lds")
    E(f"s_cmp_ge_u32 {sJ}, {0 if 'f1' in abl or 'ffnh' in abl else 7}\ns_cbranch_scc1 L_notF1")
    E(f"s_mul_i32 s45, {sX}, 7\ns_add_u32 s45, s45, {sJ}\ns_lshr_b32 s46, s45, 1\ns_and_b32 s45, s45, 1")
    E("s_cselect_b32 s56, s18, s16\ns_cselect_b32 s57, s19, s17")
    E(f"s_lshl_b32 {sT}, s46, 7\ns_sub_u32 {sT2}, {512*3584}, {sT}")
    srd(40, 56, sT, sT2)
    E(f"s_mul_i32 s45, s45, 28672\ns_lshl_b32 s46, s46, 10\ns_add_u32 s45, s45, s46\ns_add_u32 s45, s45, {GB}")
    E("v_lshlrev_b32 v28, 10, v1\nv_lshl_add_u32 v28, v2, 4, v28")
    for t in range(4): E(f"buffer_load_dwordx4 v[{40+4*t}:{43+4*t}], v28, s[36:39], 0 offen offset:{256*t}")
    E("v_mul_u32_u24 v4, 0xe00, v38\nv_lshl_add_u32 v4, v39, 4, v4")
    f1 = {"n": 0}
    def f1_issue():
        n = f1["n"]
        if n >= DF: E(f"s_waitcnt vmcnt({DF-1})")
        dma(n, 3584, 7); f1["n"] += 1
    for n in range(DF + 1): f1_issue()
    U = 128
    for e in range(16): E(f"v_lshlrev_b32 v{U+2*e}, 16, v{40+e}\nv_and_b32 v{U+2*e+1}, 0xffff0000, v{40+e}")
    for n in range(DF - 1): f1_issue()
    E(f"v_add_f32 v24, v{U}, v{U+1}\nv_add_f32 v25, v{U+2}, v{U+3}")
    for e in range(4, 32): E(f"v_add_f32 v{24+(e&1)}, v{24+(e&1)}, v{U+e}")
    E("v_add_f32 v24, v24, v25")
    row_allreduce("v_add_f32", "v24")
    E("v_mul_f32 v24, 0x3b000000, v24\nv_mov_b32 v25, 0\nv_mov_b32 v26, 0")
    for e in range(32): E(f"v_sub_f32 v27, v{U+e}, v24\nv_fmac_f32 v{25+(e&1)}, v27, v27")
    E("v_add_f32 v25, v25, v26")
    row_allreduce("v_add_f32", "v25")
    ln_finish("v24", "v25")
    for e in range(32): E(f"v_sub_f32 v{U+e}, v{U+e}, v24\nv_cvt_pk_bf16_f32 v{U+e}, 0, v{U+e}\nv_mul_f32 v{U+e}, v{U+e}, v25")
    for e in range(16): E(f"v_cvt_pk_bf16_f32 v{40+e}, v{U+2*e}, v{U+2*e+1}")
    for t in range(4): E(f"ds_write_b128 v28, v[{40+4*t}:{43+4*t}] offset:{XN+256*t}")
    E("v_lshlrev_b32 v7, 10, v7\nv_lshl_add_u32 v7, v1, 4, v7")
    for sidx in range(16):
        while f1["n"] < 64 and f1["n"] - DF < 4*sidx + 4: f1_issue()
        if f1["n"] == 64: E(f"s_waitcnt vmcnt({min(DF, 64 - 4*sidx - 4)})")
        assert f1["n"] <= 4*sidx + 28
        tile_step(sidx, sidx % 7, "v7", XN + 64*sidx)
    tile_select()
    for r in range(4): E(f"v_cvt_pk_bf16_f32 v{FA+r}, 0, v{FA+r}")
    for r in range(4): E(f"v_or_b32 v{FA+r}, v{FA+r}, v{32+r}")
    E(f"buffer_store_dwordx4 v[{FA}:{FA+3}], v5, s[52:55], s45 offen {hs}")
    stamp(4)
    wo_loads(0, 32, wof1)
    stamp(5)
    E("s_branch L_tail")
    E.label("L_notF1")
    E(f"s_lshr_b32 s45, {sJ}, 3\ns_cmp_eq_u32 s45, {9 if 'ffnh' in abl else 1}\ns_cbranch_scc1 L_F2")
    wo_loads(0, 32, wo0)
    stamp(5)
    for ci, c in enumerate(cps):
        if not c.get("glob"): continue
        for jr in jrel[:-1]: E(f"s_cmp_eq_u32 {sJ}, {jr}\ns_cbranch_scc1 L_rl")
        E(f"s_cmp_lg_u32 {sJ}, {jrel[-1]}\ns_cbranch_scc1 L_tail")
        E.label("L_rl")
        E("ds_read_b64 v[28:29], v9\ns_waitcnt lgkmcnt(0)")
        E("v_max_u32 v30, v28, v29\nv_cmp_eq_u32 vcc, -1, v30\ns_nop 4")
        spin_tail("L_rl", 8)
        E(f"s_lshl_b32 s45, {sX}, 12\ns_add_u32 s45, s45, {PG + 128*ci}\nv_mov_b32 v28, {sTAG}\nv_lshlrev_b32 v29, 2, v0\ns_movk_i32 s44, 64")
        E.label("L_rg")
        E("s_load_dwordx8 s[64:71], s[24:25], 0 glc\ns_waitcnt lgkmcnt(0)")
        for k in range(1, 8): E(f"s_add_u32 s64, s64, s{64+k}")
        E(f"s_cmp_ge_u32 s64, {gthr}\ns_cbranch_scc1 L_rg_ok\ns_sub_u32 s44, s44, 1\ns_cmp_gt_i32 s44, 0\ns_cbranch_scc1 L_rg")
        E.label("L_rg_ok")
        E("s_mov_b32 exec_hi, 0\nbuffer_store_dword v28, v29, s[52:55], s45 offen\ns_mov_b32 exec_hi, -1")
        stamp(4)
    E("s_branch L_tail")
    E.label("L_F2")
    E(f"s_and_b32 s46, {sJ}, 7\ns_mul_i32 {sT}, {sX}, {224*1024}\ns_lshl_b32 s45, s46, 7\ns_add_u32 {sT}, {sT}, s45\ns_sub_u32 {sT2}, {1792*1024}, {sT}")
    srd(40, 20, sT, sT2)
    E(f"s_lshl_b32 s46, s46, 3\ns_add_u32 s46, s46, {sX}\ns_lshl_b32 s46, s46, 10\ns_add_u32 s46, s46, {DBX}")
    E("v_lshlrev_b32 v4, 10, v38\nv_lshl_add_u32 v4, v39, 4, v4")
    for n in range(28):
        if n >= DF2: E(f"s_waitcnt vmcnt({DF2-1})")
        dma(n, 1024, 7)
    wo_loads(0, f2at, wof2)
    E(f"v_lshrrev_b32 v4, 5, v0\nv_mul_u32_u24 v4, 0x7000, v4\nv_and_b32 v28, 31, v0\nv_lshl_add_u32 v4, v28, 4, v4")
    E(f"s_mul_i32 s45, {sX}, {224*16}\ns_add_u32 s45, s45, {GB}")
    E.fence()
    E.label("L_pg")
    for i in range(7): E(f"buffer_load_dwordx4 v[{40+4*i}:{43+4*i}], v4, s[52:55], s45 offen offset:{512*i} {hs}")
    E("s_waitcnt vmcnt(0)")
    for i in range(28): E(f"v_xor_b32 v{40+i}, v{40+i}, v{32+(i&3)}")
    E("v_or_b32 v28, v40, v41")
    for i in range(2, 28, 2): E(f"v_or3_b32 v28, v28, v{40+i}, v{41+i}")
    E("v_and_b32 v28, 0xffff, v28\nv_cmp_ne_u32 vcc, 0, v28\ns_nop 4")
    if "f1" in abl: E("s_mov_b64 vcc, 0")
    spin_tail("L_pg", 32)
    for r in range(4): E(f"v_mov_b32 v{68+r}, v{64+r}")
    E("v_lshlrev_b32 v28, 1, v0")
    for i in range(4):
        for r in range(4): E(f"v_permlane32_swap_b32 v{40+8*i+r}, v{44+8*i+r}")
        for r in range(4): E(f"v_max_f32 v{40+8*i+r}, 0, v{40+8*i+r}")
        for r in range(4): E(f"v_mul_f32 v{40+8*i+r}, v{40+8*i+r}, v{44+8*i+r}")
        for r in range(4): E(f"v_cvt_pk_bf16_f32 v{40+8*i+r}, v{40+8*i+r}, v{40+8*i+r}")
        for r in range(4): E(f"ds_write_b16 v28, v{40+8*i+r} offset:{XN+512*r+128*i}")
    E("v_lshlrev_b32 v7, 9, v7\nv_lshl_add_u32 v7, v1, 4, v7")
    for sidx in range(7): tile_step(sidx, sidx, "v7", XN + 64*sidx)
    tile_select()
    for r in range(4): E(f"v_and_or_b32 v{FA+r}, v{FA+r}, {sMSK}, v{32+r}")
    E(f"buffer_store_dwordx4 v[{FA}:{FA+3}], v5, s[52:55], s46 offen {hs}")
    stamp(6)
    wo_loads(f2at, 32, wof2)
    stamp(5)
    E("s_branch L_tail")
    E.label("L_H123")
    wo_loads(0, mlat, wo123)
    E("s_cmp_eq_u32 s35, 2\ns_cbranch_scc1 L_H2")
    wo_loads(mlat, 32, wo123)
    stamp(5)
    E("s_cmp_lg_u32 s35, 1\ns_cbranch_scc1 L_tail")
    E("v_and_b32 v7, 7, v0\nv_lshrrev_b32 v36, 3, v0")
    E(f"s_lshl_b32 s45, {sX}, 7\ns_and_b32 s46, {sJ}, 7\ns_lshl_b32 s46, s46, 4\ns_add_u32 s46, s46, s45")
    E(f"s_lshr_b32 s47, {sJ}, 3")
    E("s_lshl_b32 s72, s47, 10\ns_add_u32 s72, s72, s46")
    E("v_lshlrev_b32 v33, 1, v7\nbuffer_load_ushort v34, v33, s[36:39], s72 offen")
    E("v_lshlrev_b32 v35, 12, v36\nv_lshl_add_u32 v35, v7, 2, v35\ns_lshl_b32 s73, s46, 1\nv_add_u32 v35, s73, v35")
    E("s_lshl_b32 s64, s47, 18")
    for t in range(1, 8): E(f"s_add_u32 s{64+t}, s{63+t}, 0x8000")
    if ypre:
        for t in range(8):
            E(f"buffer_load_dword v{40+t}, v35, s[52:55], s{64+t} offen {hs}")
            if t & 1: E("s_waitcnt vmcnt(0)")
    tag("v38", "v7")
    E("v_and_b32 v6, 1, v0\nv_lshl_add_u32 v6, v6, 2, s47")
    tag("v39", "v6")
    E("v_lshlrev_b32 v4, 10, v36\nv_lshl_add_u32 v4, v7, 4, v4")
    E(f"s_lshl_b32 s44, {sX}, 13\ns_and_b32 s45, {sJ}, 7\ns_lshl_b32 s45, s45, 7\ns_add_u32 s44, s44, s45\ns_lshl_b32 s45, s47, 2\ns_add_u32 s44, s44, s45\ns_add_u32 s44, s44, {DBX}")
    E.fence()
    E.label("L_pd")
    E(f"buffer_load_dword v40, v4, s[52:55], s44 offen {hs}\ns_waitcnt vmcnt(0)")
    E("v_xor_b32 v40, v40, v39\nv_and_b32 v28, 0xff, v40\nv_cmp_ne_u32 vcc, 0, v28\ns_nop 4")
    if "ffnh" in abl: E("s_mov_b64 vcc, 0")
    spin_tail("L_pd", 16)
    E(f"v_lshlrev_b32 v34, 16, v34\nv_add_f32_dpp v40, v40, v40 row_ror:8 {DPPF}")
    xrow_allreduce("v_add_f32", "v40", "v41")
    E(f"v_cvt_pk_bf16_f32 v40, 0, v40\nv_mul_f32 v41, 0xbfb8aa3b, v40\nv_exp_f32 v41, v41\nv_add_f32 v41, 1.0, v41")
    E("v_rcp_f32 v41, v41\nv_mul_f32 v41, v40, v41\nv_cvt_pk_bf16_f32 v32, 0, v41")
    stamp(4)
    E.fence()
    E("s_branch L_tail")
    E.label("L_H2")
    E("v_and_b32 v7, 7, v0")
    tag("v38", "v7")
    E("v_and_b32 v7, 31, v0\nv_lshlrev_b32 v7, 2, v7\nv_and_b32 v6, 1, v0\nv_cmp_eq_u32 s[64:65], 1, v6")
    E.fence()
    E.label("L_ml")
    E("ds_read_b64 v[28:29], v9\ns_waitcnt lgkmcnt(0)")
    E("v_max_u32 v30, v28, v29\nv_cmp_eq_u32 vcc, -1, v30\ns_nop 4")
    spin_tail("L_ml", 8)
    E(f"v_max_f32_dpp v30, v28, v28 quad_perm:[1,0,3,2] {DPPF}\nv_max_f32_dpp v30, v30, v30 quad_perm:[2,3,0,1] {DPPF}")
    E(f"v_and_b32 v30, {sMSK}, v30")
    E(f"v_sub_f32 v31, v28, v30\nv_mul_f32 v31, {LOG2E:#x}, v31\nv_exp_f32 v31, v31\nv_mul_f32 v31, v31, v29")
    E(f"v_add_f32_dpp v31, v31, v31 quad_perm:[1,0,3,2] {DPPF}\nv_add_f32_dpp v31, v31, v31 quad_perm:[2,3,0,1] {DPPF}")
    E(f"v_and_b32 v31, {sMSK}, v31")
    E("v_cndmask_b32 v36, v30, v31, s[64:65]\nv_or_b32 v36, v36, v38")
    E("s_mov_b32 exec_hi, 0")
    E(f"buffer_store_dword v36, v7, s[52:55], {sP} offen offset:3072 {hs}")
    E(f"s_mov_b64 exec, -1\ns_xor_b32 s45, {sP}, 0x1000")
    wo_loads(mlat, 32, wo123)
    stamp(5)
    E.fence()
    E.label("L_pm")
    E(f"buffer_load_dword v40, v7, s[52:55], s45 offen offset:3072 {hs}\ns_waitcnt vmcnt(0)")
    E("v_xor_b32 v40, v40, v38\nv_and_b32 v41, 0xff, v40\nv_cmp_ne_u32 vcc, 0, v41\ns_nop 4")
    if "noml" in abl: E("s_mov_b64 vcc, 0")
    spin_tail("L_pm", 8)
    E(f"v_mov_b32_dpp v36, v40 quad_perm:[0,0,0,0] {DPPF}\nv_mov_b32_dpp v39, v40 quad_perm:[1,1,1,1] {DPPF}")
    E("v_max_f32 v41, v30, v36\nv_sub_f32 v30, v30, v41\nv_sub_f32 v36, v36, v41\nv_sub_f32 v28, v28, v41")
    E(f"v_mul_f32 v30, {LOG2E:#x}, v30\nv_mul_f32 v36, {LOG2E:#x}, v36\nv_mul_f32 v28, {LOG2E:#x}, v28")
    E("v_exp_f32 v30, v30\nv_exp_f32 v36, v36\nv_exp_f32 v28, v28")
    E("v_mul_f32 v31, v31, v30\nv_mul_f32 v39, v39, v36\nv_add_f32 v31, v31, v39\nv_rcp_f32 v31, v31\nv_mul_f32 v28, v28, v31")
    E(f"v_and_b32 v29, 3, v0\nv_lshlrev_b32 v29, 2, v29\nds_write_b32 v29, v28 offset:{FW}")
    E("s_waitcnt lgkmcnt(0)")
    stamp(6)
    E.fence()
    E.label("L_tail")
    AR = 64
    E(f"v_and_b32 v6, 3, v0\nv_mul_u32_u24 v6, {OPS}, v6\nv_mov_b32 v4, {4*OPS}\nv_bfe_u32 v7, v0, 2, 2\nv_cmp_eq_u32 vcc, v7, v1\nv_cndmask_b32 v3, v4, v6, vcc")
    E("v_and_b32 v7, 7, v0")
    tag("v38", "v7")
    E("v_mov_b32 v4, 0\ns_lshl_b32 s46, s35, 9\nv_lshl_add_u32 v8, v0, 2, s46")
    srd(40, 22, None, 4096)
    E("s_barrier")
    stamp(7)
    if stamps: E("s_waitcnt lgkmcnt(0)")
    pre = 8
    def aread(k): E(f"ds_read_b128 v[{AR+4*k}:{AR+4*k+3}], v3 offset:{OP+16*k}")
    for k in range(pre): aread(k)
    for k in range(16):
        if k + pre < 16: E(f"s_waitcnt lgkmcnt({pre-1})"); aread(k + pre)
        elif k + pre == 16: E(f"s_waitcnt lgkmcnt({pre-1})\nds_read_b128 v[28:31], v4 offset:{FW}")
        else: E(f"s_waitcnt lgkmcnt({16-k})")
        for a_ in range(2):
            E(f"v_mfma_f32_16x16x32_bf16 v[{16+4*a_}:{19+4*a_}], v[{AR+4*k}:{AR+4*k+3}], v[{WB+8*k+4*a_}:{WB+8*k+4*a_+3}], " + ("0" if k == 0 else f"v[{16+4*a_}:{19+4*a_}]"))
    E("s_waitcnt lgkmcnt(0)")
    for a_ in range(2):
        E(f"v_mul_f32 v{10+a_}, v28, v{16+4*a_}")
        for w in range(1, 4): E(f"v_fmac_f32 v{10+a_}, v{28+w}, v{16+4*a_+w}")
        E(f"v_and_or_b32 v{10+a_}, v{10+a_}, {sMSK}, v38")
        if "noy" not in abl: E(f"buffer_store_dword v{10+a_}, v8, s[52:55], {sP} offen offset:{256*a_} {ys}")
    stamp(8)
    E("s_cmp_lg_u32 s35, 1\ns_cbranch_scc1 L_done")
    if "nopoll" in abl:
        stamp(9)
        E("s_branch L_done")
    E.label("L_poll")
    for t in range(8): E(f"buffer_load_dword v{40+t}, v35, s[52:55], s{64+t} offen {hs}")
    for t in range(8):
        E(f"s_waitcnt vmcnt({7-t})\nv_xor_b32 v{40+t}, v{40+t}, v38")
    E("v_or3_b32 v28, v40, v41, v42\nv_or3_b32 v29, v43, v44, v45\nv_or3_b32 v28, v28, v46, v47\nv_or_b32 v28, v28, v29")
    E("v_and_b32 v28, 0xff, v28\nv_cmp_ne_u32 vcc, 0, v28")
    E("v_add_f32 v40, v40, v41\nv_add_f32 v42, v42, v43\nv_add_f32 v44, v44, v45\nv_add_f32 v46, v46, v47\nv_add_f32 v40, v40, v42")
    spin_tail("L_poll", psleep)
    E("v_add_f32 v44, v44, v46\nv_add_f32 v40, v40, v44")
    E(f"v_add_f32_dpp v40, v40, v40 row_ror:8 {DPPF}")
    xrow_allreduce("v_add_f32", "v40", "v41")
    E("v_cvt_pk_bf16_f32 v40, 0, v40\nv_mul_f32 v40, v40, v32\nv_cvt_pk_bf16_f32 v40, 0, v40\nv_add_f32 v40, v40, v34\nv_cvt_pk_bf16_f32 v40, v40, v40")
    E("s_mov_b64 exec, 0xff")
    E(f"buffer_store_short v40, v33, s[40:43], s72 offen {ofl}")
    stamp(9)
    E.fence()
    E.label("L_done")
    stamp_flush(list(range(10)))
    E.label("L_end")
    E("s_endpgm")
    E.raw(f""".section .rodata,"a"
.p2align 6
.amdhsa_kernel {KN}
  .amdhsa_next_free_vgpr 256
  .amdhsa_next_free_sgpr 102
  .amdhsa_accum_offset 256
  .amdhsa_group_segment_fixed_size 0
  .amdhsa_kernarg_size 96
  .amdhsa_user_sgpr_count 2
  .amdhsa_user_sgpr_kernarg_segment_ptr 1
  .amdhsa_system_sgpr_workgroup_id_x 1
.end_amdhsa_kernel""")
    return E.text()

if __name__ == "__main__":
    kw = eval("dict(" + (sys.argv[2] if len(sys.argv) > 2 else "") + ")")
    open(sys.argv[1], "w").write(gen(**kw))
```
